```python
import torch

def _softmax(x, axis=-1):
    return torch.softmax(x, dim=axis)
def _gelu(x):
    return torch.nn.functional.gelu(x, approximate="tanh")
def _silu(x):
    return torch.nn.functional.silu(x)
def _sigmoid(x):
    return torch.sigmoid(x)
def _layernorm(x, axis=-1, eps=1e-5):
    m = x.mean(dim=axis, keepdim=True)
    v = x.var(dim=axis, keepdim=True, unbiased=False)
    return (x - m) / torch.sqrt(v + eps)
def _scatter_add(tgt, idx, src, axis=0):
    return tgt.clone().index_add_(axis, idx, src)
def _segment_sum(src, seg, n):
    out = torch.zeros((n,) + src.shape[1:], dtype=src.dtype)
    return out.index_add_(0, seg, src)
def _pad(x, pw):
    flat = tuple(v for pair in reversed(pw) for v in pair)
    return torch.nn.functional.pad(x, flat)

kernel_name = 'concat_heads__mha_block_cached__mha_block_cached__near_ridge'

def setup_inputs():

    _w = (lambda a: (lambda t: t.to(torch.bfloat16) if t.is_floating_point() else t)(torch.as_tensor(a)))
    def _A_setup():
        B, Sq, D = 8, 160, 1024
        H, Sk, Dh = 32, 512, 128
        return {
            "x": _w((lambda *s: torch.randn(*s, dtype=torch.bfloat16) * 0.8)(B, Sq, D)),
            "k_cache": _w((lambda *s: torch.randn(*s, dtype=torch.bfloat16) * 0.8)(B, H, Sk, Dh)),
            "v_cache": _w((lambda *s: torch.randn(*s, dtype=torch.bfloat16) * 0.05)(B, H, Sk, Dh)),
            "wq": _w((lambda *s: torch.randn(*s, dtype=torch.bfloat16) * 0.8)(D, H * Dh) * (D ** -0.5)),
            "wo": _w((lambda *s: torch.randn(*s, dtype=torch.bfloat16) * 0.05)(H * Dh, D) * ((H * Dh) ** -0.5)),
        }
    _A_in = _A_setup()

    def _B_setup():
        B, Sq, D = 8, 160, 1024
        H, Sk, Dh = 32, 512, 128
        return {
            "x": _w((lambda *s: torch.randn(*s, dtype=torch.bfloat16) * 0.8)(B, Sq, D)),
            "k_cache": _w((lambda *s: torch.randn(*s, dtype=torch.bfloat16) * 0.8)(B, H, Sk, Dh)),
            "v_cache": _w((lambda *s: torch.randn(*s, dtype=torch.bfloat16) * 0.05)(B, H, Sk, Dh)),
            "wq": _w((lambda *s: torch.randn(*s, dtype=torch.bfloat16) * 0.8)(D, H * Dh) * (D ** -0.5)),
            "wo": _w((lambda *s: torch.randn(*s, dtype=torch.bfloat16) * 0.05)(H * Dh, D) * ((H * Dh) ** -0.5)),
        }
    _B_in = _B_setup()

    return {
        "A_x": _A_in["x"],
        "A_k_cache": _A_in["k_cache"],
        "A_v_cache": _A_in["v_cache"],
        "A_wq": _A_in["wq"],
        "A_wo": _A_in["wo"],
        "B_x": _B_in["x"],
        "B_k_cache": _B_in["k_cache"],
        "B_v_cache": _B_in["v_cache"],
        "B_wq": _B_in["wq"],
        "B_wo": _B_in["wo"],
    }

def reference(A_x, A_k_cache, A_v_cache, A_wq, A_wo, B_x, B_k_cache, B_v_cache, B_wq, B_wo):
    def _A_ref(x, k_cache, v_cache, wq, wo):
        B, Sq, D = x.shape
        H, Dh = 32, 128
        q = (lambda x, *d: x.permute(*d))((x @ wq).reshape(B, Sq, H, Dh), 0, 2, 1, 3)
        scores = torch.einsum("bhqd,bhkd->bhqk", q, k_cache) * (Dh ** -0.5)
        p = _softmax(scores, axis=-1)
        o = torch.einsum("bhqk,bhkd->bhqd", p, v_cache)
        return (lambda x, *d: x.permute(*d))(o, 0, 2, 1, 3).reshape(B, Sq, H * Dh) @ wo

    def _B_ref(x, k_cache, v_cache, wq, wo):
        B, Sq, D = x.shape
        H, Dh = 32, 128
        q = (lambda x, *d: x.permute(*d))((x @ wq).reshape(B, Sq, H, Dh), 0, 2, 1, 3)
        scores = torch.einsum("bhqd,bhkd->bhqk", q, k_cache) * (Dh ** -0.5)
        p = _softmax(scores, axis=-1)
        o = torch.einsum("bhqk,bhkd->bhqd", p, v_cache)
        return (lambda x, *d: x.permute(*d))(o, 0, 2, 1, 3).reshape(B, Sq, H * Dh) @ wo

    a = _A_ref(A_x, A_k_cache, A_v_cache, A_wq, A_wo)
    b = _B_ref(B_x, B_k_cache, B_v_cache, B_wq, B_wo)
    return torch.concatenate([a, b], axis=-1)
```

```python
import re


def R(prefix, lo, n=1):
    if n == 1:
        return f"{prefix}{lo}"
    return f"{prefix}[{lo}:{lo + n - 1}]"


_REG = re.compile(r"^-?(?:abs\()?([vas])(\d+)\)?$|^-?([vas])\[(\d+):(\d+)\]$")


def regs_of(op):
    op = str(op).strip()
    if op in ("m0", "vcc", "exec", "scc"):
        return {op}
    m = _REG.match(op)
    if not m:
        return set()
    if m.group(1):
        return {f"{m.group(1)}{m.group(2)}"}
    return {f"{m.group(3)}{i}" for i in range(int(m.group(4)), int(m.group(5)) + 1)}


class Ins:
    __slots__ = ("text", "kind", "defs", "uses", "tag", "need", "cost", "srcc", "wide")

    def __init__(self, text, kind, defs=(), uses=(), tag=None, need=None, srcc=(), wide=False):
        self.text = text
        self.kind = kind
        self.defs = set(defs)
        self.uses = set(uses)
        self.tag = tag
        self.need = need
        self.srcc = set(srcc)
        self.wide = wide
        self.cost = {"trans": 8, "valu": 4, "ds_r": 4, "ds_w": 4, "vm_ld": 4, "vm_dma": 4, "vm_st": 4,
                     "perm": 4}.get(kind, 0)

    def __repr__(self):
        return self.text


def _ru(*ops):
    s = set()
    for o in ops:
        s |= regs_of(o)
    return s


def mfma(d, a, b, c):
    return Ins(f"v_mfma_f32_16x16x32_bf16 {d}, {a}, {b}, {c}", "mfma", _ru(d), _ru(a, b, c), srcc=_ru(c))


_TRANS = ("v_exp_f32", "v_rcp_f32", "v_log_f32", "v_rsq_f32", "v_sqrt_f32")


def valu(op, d, *src, rmw=False, mods=""):
    kind = "trans" if op in _TRANS else "valu"
    uses = _ru(*src)
    if rmw:
        uses |= _ru(d)
    defs = _ru(d)
    if op.startswith("v_cndmask") and len(src) == 2:
        uses.add("vcc")
    txt = f"{op} {d}, " + ", ".join(str(s) for s in src) + (f" {mods}" if mods else "")
    return Ins(txt, kind, defs, uses)


def perm(op, a, b):
    return Ins(f"{op} {a}, {b}", "perm", _ru(a, b), _ru(a, b))


_NOSCC = ("s_mov_b32", "s_mov_b64", "s_mul_i32", "s_mul_hi_u32", "s_cselect_b32", "s_cselect_b64", "s_movk_i32",
          "s_getpc_b64", "s_getreg_b32")


def salu(op, d, *src):
    uses = _ru(*src)
    if op.startswith("s_cmp") or op.startswith("s_bitcmp"):
        return Ins(f"{op} {d}, " + ", ".join(str(s) for s in src), "salu", {"scc"}, uses | _ru(d))
    defs = _ru(d)
    if op not in _NOSCC:
        defs.add("scc")
    if op in ("s_cselect_b32", "s_cselect_b64", "s_addc_u32", "s_subb_u32"):
        uses.add("scc")
    if op in ("s_addk_i32", "s_mulk_i32"):
        uses |= _ru(d)
    if "saveexec" in op:
        defs.add("exec")
        uses.add("exec")
    txt = f"{op} {d}" + ("".join(f", {s}" for s in src))
    return Ins(txt, "salu", defs, uses)


def smem(op, d, base, off):
    return Ins(f"{op} {d}, {base}, {off}", "smem", _ru(d), _ru(base, off))


def ds_read(op, d, addr, off=0, tag=None):
    assert 0 <= off < 65536, off
    return Ins(f"{op} {d}, {addr}" + (f" offset:{off}" if off else ""), "ds_r", _ru(d), _ru(addr), tag=tag)


def ds_write(op, addr, data, off=0, tag=None):
    assert 0 <= off < 65536, off
    return Ins(f"{op} {addr}, {data}" + (f" offset:{off}" if off else ""), "ds_w", (), _ru(addr, data), tag=tag)


def buf_dma(voff, srd, soff, imm=0, flags="", tag=None):
    assert 0 <= imm < 4096
    t = f"buffer_load_dwordx4 {voff}, {srd}, {soff} offen" + (f" offset:{imm}" if imm else "") + \
        (f" {flags}" if flags else "") + " lds"
    return Ins(t, "vm_dma", (), _ru(voff, srd, soff) | {"m0"}, tag=tag)


def buf_load(op, d, voff, srd, soff, imm=0, flags="", tag=None):
    assert 0 <= imm < 4096
    t = f"{op} {d}, {voff}, {srd}, {soff} offen" + (f" offset:{imm}" if imm else "") + (f" {flags}" if flags else "")
    return Ins(t, "vm_ld", _ru(d), _ru(voff, srd, soff), tag=tag)


def buf_store(op, data, voff, srd, soff, imm=0, flags="", tag=None):
    assert 0 <= imm < 4096
    t = f"{op} {data}, {voff}, {srd}, {soff} offen" + (f" offset:{imm}" if imm else "") + (f" {flags}" if flags else "")
    return Ins(t, "vm_st", (), _ru(data, voff, srd, soff), tag=tag, wide=op.endswith(("x3", "x4")))


def raw(text, kind="other", defs=(), uses=()):
    return Ins(text, kind, defs, uses)


def barrier():
    return Ins("s_barrier", "barrier")


def label(name):
    return Ins(f"{name}:", "label")


def waitvm(pred):
    return Ins("; waitvm", "waitvm", need=pred)


def waitlds(pred=lambda t: True):
    return Ins("; waitlds", "waitlds", need=pred)


def nop(n):
    return Ins(f"s_nop {n - 1}", "nop", tag=n)


VM = ("vm_ld", "vm_dma", "vm_st")
LG = ("ds_r", "ds_w")


def _wait_text(vm, lg):
    parts = []
    if vm is not None:
        assert vm <= 63
        parts.append(f"vmcnt({vm})")
    if lg is not None:
        parts.append(f"lgkmcnt({min(lg, 15)})")
    return "s_waitcnt " + " ".join(parts)


class WaitState:
    def __init__(self):
        self.vm = []
        self.lg = []
        self.sm = []

    def apply(self, vm, lg):
        if vm is not None:
            self.vm = self.vm[len(self.vm) - vm:] if vm < len(self.vm) else self.vm
            if vm == 0:
                self.vm = []
        if lg is not None:
            if lg == 0:
                self.lg = []
                self.sm = []
            elif not self.sm and lg < len(self.lg):
                self.lg = self.lg[len(self.lg) - lg:]


def insert_waits(code, st=None, hoist=True):
    st = st or WaitState()
    out = []
    seq = 0
    shadow = None
    shadow_seq = None
    for ins in code:
        touched = ins.uses | ins.defs
        vm_need = None
        lg_need = None
        if ins.kind == "waitvm":
            for i, (o, _) in enumerate(st.vm):
                if ins.need(o.tag):
                    vm_need = i
        elif ins.kind == "waitlds":
            for i, (o, _) in enumerate(st.lg):
                if ins.need(o.tag):
                    lg_need = i
        else:
            for i, (o, _) in enumerate(st.vm):
                if o.defs & touched:
                    vm_need = i
            for i, (o, _) in enumerate(st.lg):
                if o.defs & touched:
                    lg_need = i
        sm_need = any(o.defs & touched for o in st.sm)
        if vm_need is not None or lg_need is not None or sm_need:
            at = len(out)
            limit = None
            if hoist and ins.kind == "mfma" and shadow is not None and not sm_need:
                ok = True
                if vm_need is not None and st.vm[vm_need][1] >= shadow_seq:
                    ok = False
                if lg_need is not None and st.lg[lg_need][1] >= shadow_seq:
                    ok = False
                if ok:
                    at, limit = shadow, shadow_seq
            def count(q, i):
                later = q[i + 1:]
                return len([1 for _, s in later if limit is None or s < limit])
            vm = count(st.vm, vm_need) if vm_need is not None else None
            lg = count(st.lg, lg_need) if lg_need is not None else None
            if sm_need or (lg is not None and st.sm):
                lg = 0
            if lg is not None and lg > 15:
                lg = 15
            w = Ins(_wait_text(vm, lg), "wait", tag=(vm, lg))
            out.insert(at, w)
            if vm_need is not None:
                st.vm = st.vm[vm_need + 1:]
            if lg == 0 and limit is None:
                st.lg = []
                st.sm = []
            elif lg_need is not None:
                st.lg = st.lg[lg_need + 1:]
        if ins.kind in ("waitvm", "waitlds"):
            continue
        if ins.kind == "wait":
            st.apply(*ins.tag)
        out.append(ins)
        if ins.kind in VM:
            st.vm.append((ins, seq))
            seq += 1
            assert len(st.vm) <= 63, "vmcnt overflow"
        elif ins.kind in LG:
            st.lg.append((ins, seq))
            seq += 1
        elif ins.kind == "smem":
            st.sm.append(ins)
        if ins.kind == "mfma":
            shadow, shadow_seq = len(out), seq
        elif ins.kind in ("label", "branch", "barrier"):
            shadow = None
    return out


def wait(vm=None, lg=None):
    return Ins(_wait_text(vm, lg), "wait", tag=(vm, lg))


VALUISH = ("valu", "trans", "perm")


def _required(prev, cur):
    n = 0
    pk, ck = prev.kind, cur.kind
    vdefs = {r for r in prev.defs if r[0] in "va" and r not in ("vcc",)}
    sdefs = {r for r in prev.defs if (r[0] == "s" and r != "scc") or r == "vcc"}
    if pk in VALUISH:
        if ck == "mfma" and vdefs & cur.uses:
            n = max(n, 2)
        if ck == "perm" and vdefs & cur.uses:
            n = max(n, 2)
        if ("readfirstlane" in cur.text or "readlane" in cur.text) and vdefs & cur.uses:
            n = max(n, 1)
        if "dpp" in cur.text or "row_" in cur.text or "quad_perm" in cur.text:
            if vdefs & cur.uses:
                n = max(n, 2)
        if ck in VM and sdefs & cur.uses:
            n = max(n, 5)
        if ck in VALUISH and sdefs & cur.uses:
            n = max(n, 2)
        if ck == "salu" and sdefs & cur.uses:
            n = max(n, 1)
        if pk == "trans" and ck in VALUISH and vdefs & cur.uses:
            n = max(n, 1)
        if "exec" in prev.defs and ck == "mfma":
            n = max(n, 4)
    if pk == "mfma":
        if ck == "mfma":
            ab = cur.uses - cur.srcc
            if prev.defs & ab:
                n = max(n, 8)
            if prev.defs & cur.srcc and prev.defs != cur.srcc:
                n = max(n, 6)
        elif prev.defs & (cur.uses | cur.defs):
            n = max(n, 8)
        if ck in VALUISH and prev.srcc & cur.defs:
            n = max(n, 3)
    if pk == "salu" and "m0" in prev.defs and ck == "vm_dma":
        n = max(n, 1)
    if pk == "vm_st" and prev.wide and ck in VALUISH and (prev.uses & cur.defs):
        n = max(n, 2)
    if pk == "vm_st" and prev.wide and ck in ("ds_r", "vm_ld", "mfma") and (prev.uses & cur.defs):
        n = max(n, 1)
    return n


def fix_hazards(code, history=()):
    out = []
    hist = [i for i in history if i.kind != "label"][-12:]
    padded = 0
    for ins in code:
        if ins.kind == "label":
            out.append(ins)
            continue
        need = 0
        dist = 0
        for p in reversed(hist):
            r = _required(p, ins)
            if r > dist:
                need = max(need, r - dist)
            dist += p.tag if p.kind == "nop" else 1
            if dist >= 12:
                break
        if need:
            n = nop(need)
            out.append(n)
            hist.append(n)
            padded += need
        out.append(ins)
        hist.append(ins)
        hist = hist[-14:]
    return out, padded


def text(code):
    return "\n".join(("" if i.kind == "label" else "    ") + i.text for i in code) + "\n"


class Gaps:
    def __init__(self, mfmas):
        self.m = list(mfmas)
        self.s = [[] for _ in self.m]
        self.v = [[] for _ in self.m]

    def load(self, g):
        return sum(i.cost for i in self.v[g])

    def put(self, g, *ins):
        for i in ins:
            (self.v if i.cost else self.s)[g].append(i)

    def put_seq(self, g, *ins):
        self.v[g].extend(ins)

    def place(self, ins, lo, hi, cap=8):
        hi = min(hi, len(self.m) - 1)
        for g in range(lo, hi + 1):
            if self.load(g) + ins.cost <= cap:
                self.put(g, ins)
                return g
        g = min(range(lo, hi + 1), key=self.load)
        self.put(g, ins)
        return g

    def schedule(self, ops, cap=8):
        at = [None] * len(ops)
        todo = set(range(len(ops)))
        over = 0
        g = min(o["lo"] for o in ops)
        while todo:
            assert g < len(self.m), "ran out of gaps"
            ready = [i for i in todo if ops[i]["lo"] <= g and
                     all(at[d] is not None and at[d] < g for d in ops[i].get("deps", ()))]
            ready.sort(key=lambda i: (ops[i]["hi"], i))
            for i in ready:
                fits = self.load(g) + ops[i]["ins"].cost <= cap
                if fits or ops[i]["hi"] <= g:
                    over += not fits
                    self.put(g, ops[i]["ins"])
                    at[i] = g
                    todo.discard(i)
            g += 1
        late = [i for i in range(len(ops)) if at[i] > ops[i]["hi"]]
        assert not late, [(ops[i]["ins"], at[i], ops[i]["hi"]) for i in late]
        return over

    def flatten(self):
        out = []
        for m, s, v in zip(self.m, self.s, self.v):
            out.append(m)
            out.extend(s)
            out.extend(v)
        return out
```

```python
import struct
import sys

sys.path.insert(0, "tools")
from asmir import *

NAME = "concat_heads__mha_block_cached__mha_block_cached__near_ridge"
SCALE = struct.unpack("<I", struct.pack("<f", 128 ** -0.5 * 1.4426950408889634))[0]

CFG = dict(
    kv_flags="nt",
    xw_flags="",
    wo_flags="",
    o_st_flags="",
    o_ld_flags="",
    stamps=False,
)

v = lambda i, n=1: R("v", i, n)
a = lambda i, n=1: R("a", i, n)
s = lambda i, n=1: R("s", i, n)


def srd(code, base, lo, hi, size):
    code += [salu("s_mov_b32", s(base), lo), salu("s_and_b32", s(base + 1), hi, "0xffff"),
             salu("s_mov_b32", s(base + 2), size), salu("s_mov_b32", s(base + 3), "0x20000")]


def add64(code, lo, hi, off):
    code += [salu("s_add_u32", lo, lo, off), salu("s_addc_u32", hi, hi, 0)]


def stamp(code, idx, sreg=96):
    if CFG["stamps"]:
        code += [raw(f"s_memtime s[{sreg}:{sreg + 1}]", "smem", defs={f"s{sreg}", f"s{sreg + 1}"}),
                 salu("s_mov_b32", s(70 + idx), s(sreg))]


def store_stamps(code, n, ws_lo, ws_hi, region, s_w):
    if not CFG["stamps"]:
        return
    code += [salu("s_add_u32", s(60), ws_lo, hex(region)), salu("s_addc_u32", s(61), ws_hi, 0)]
    srd(code, 64, s(60), s(61), hex(256 * 4 * 64))
    code += [salu("s_lshl_b32", s(62), s(2), 8), salu("s_lshl_b32", s(63), s_w, 6),
             salu("s_add_u32", s(62), s(62), s(63)), valu("v_mov_b32", v(1), 0)]
    for i in range(n):
        code += [valu("v_mov_b32", v(2), s(70 + i)),
                 buf_store("buffer_store_dword", v(2), v(1), s(64, 4), s(62), 4 * i)]


S_X, S_WQ, S_K, S_V, S_O = 4, 8, 12, 16, 20
S_W, S_ROT, S_KX, S_KW, S_T0, S_T1, S_LX, S_LW, S_LK, S_OFF = 24, 25, 26, 27, 28, 29, 30, 31, 32, 33
S_WS = 34
QSLOT = 53248
XB = 20480
V_DX = 1
V_DW = 3
V_RX = 4
V_RW = 7
V_DK = 13
V_RK = 17
V_RV = 19
V_ST = 21
V_T = 22
V_Q, V_S, V_P, V_NM, V_KF, V_VF = 32, 112, 152, 192, 212, 228
V_ACC = 96
A_O, A_L, A_ONE = 0, 160, 180
A_XF, A_WF = 184, 224


def k1_prologue():
    c = []
    c += [salu("s_cmp_ge_u32", s(2), 256), raw("s_cbranch_scc1 L_k1_end", "branch", uses={"scc"})]
    c += [salu("s_and_b32", s(43), s(2), 7), salu("s_lshr_b32", s(44), s(2), 3),
          salu("s_lshr_b32", s(40), s(43), 2),
          salu("s_mul_i32", s(45), s(40), 40),
          salu("s_add_u32", s(46), s(0), s(45)), salu("s_addc_u32", s(47), s(1), 0),
          smem("s_load_dwordx8", s(48, 8), s(46, 2), 0),
          smem("s_load_dwordx2", s(S_WS, 2), s(0, 2), 96),
          salu("s_bfe_u32", s(41), s(43), "0x10001"), salu("s_lshl_b32", s(41), s(41), 2),
          salu("s_and_b32", s(45), s(44), 3), salu("s_add_u32", s(41), s(41), s(45)),
          salu("s_and_b32", s(42), s(43), 1), salu("s_lshl_b32", s(42), s(42), 3),
          salu("s_lshr_b32", s(56), s(44), 2), salu("s_add_u32", s(42), s(42), s(56)),
          salu("s_lshl_b32", s(45), s(45), 1), salu("s_add_u32", s(S_ROT), s(45), s(56))]
    L, W, T0, T1, T2, T3 = v(V_T), v(V_T + 1), v(V_T + 2), v(V_T + 3), v(V_T + 4), v(V_T + 5)
    c += [valu("v_and_b32", L, 63, v(0)), valu("v_lshrrev_b32", W, 6, v(0)),
          valu("v_readfirstlane_b32", s(S_W), W)]
    c += [valu("v_bfe_u32", T0, L, 2, 3), valu("v_lshlrev_b32", T0, 11, T0),
          valu("v_lshrrev_b32", T1, 5, L), valu("v_lshl_add_u32", T0, T1, 6, T0),
          valu("v_mul_u32_u24", T1, 81920, W), valu("v_add_u32", T0, T0, T1),
          valu("v_and_b32", T1, 3, L), valu("v_and_b32", T2, 1, W), valu("v_lshlrev_b32", T2, 1, T2),
          valu("v_xor_b32", T1, T1, T2), valu("v_lshl_add_u32", v(V_DX), T1, 4, T0),
          valu("v_xor_b32", v(V_DX + 1), 32, v(V_DX))]
    c += [valu("v_bfe_u32", T0, L, 4, 1), valu("v_bfe_u32", T1, L, 2, 2),
          valu("v_lshl_add_u32", T1, T0, 3, T1), valu("v_lshlrev_b32", T1, 13, T1),
          valu("v_lshrrev_b32", T2, 5, L), valu("v_lshl_add_u32", T1, T2, 6, T1),
          valu("v_and_b32", T2, 3, L), valu("v_lshlrev_b32", T0, 1, T0), valu("v_xor_b32", T2, T2, T0),
          valu("v_lshl_add_u32", T1, T2, 4, T1), valu("v_lshl_add_u32", v(V_DW), W, 7, T1)]
    c += [valu("v_bfe_u32", T0, L, 3, 1), valu("v_and_b32", T1, 7, L), valu("v_lshlrev_b32", T1, 6, T1),
          valu("v_lshl_add_u32", T1, T0, 10, T1), valu("v_lshrrev_b32", T2, 4, L),
          valu("v_lshlrev_b32", T0, 1, T0), valu("v_xor_b32", T2, T2, T0), valu("v_lshl_add_u32", T1, T2, 4, T1),
          valu("v_and_b32", T0, 1, W), valu("v_mul_u32_u24", T0, 10240, T0), valu("v_add_u32", v(V_RX), T0, T1),
          valu("v_add_u32", v(V_RX + 1), QSLOT, v(V_RX)), valu("v_add_u32", v(V_RX + 2), 2 * QSLOT, v(V_RX))]
    c += [valu("v_lshrrev_b32", T0, 5, L), valu("v_lshlrev_b32", T0, 11, T0),
          valu("v_bfe_u32", T1, L, 2, 3), valu("v_lshl_add_u32", T0, T1, 6, T0),
          valu("v_bfe_u32", T1, L, 4, 1), valu("v_lshl_add_u32", T0, T1, 5, T0),
          valu("v_and_b32", T1, 3, L), valu("v_lshl_add_u32", T0, T1, 3, T0),
          valu("v_lshrrev_b32", T1, 1, W), valu("v_lshl_add_u32", T0, T1, 14, T0),
          valu("v_add_u32", v(V_RW), XB, T0), valu("v_xor_b32", v(V_RW + 1), 32, v(V_RW))]
    for sl in (1, 2):
        c += [valu("v_add_u32", v(V_RW + 2 * sl), sl * QSLOT, v(V_RW)),
              valu("v_add_u32", v(V_RW + 2 * sl + 1), sl * QSLOT, v(V_RW + 1))]
    c += [valu("v_bfe_u32", T0, L, 2, 2), valu("v_lshlrev_b32", T0, 8, T0),
          valu("v_lshrrev_b32", T1, 4, L), valu("v_lshl_add_u32", T0, T1, 6, T0),
          valu("v_and_b32", T1, 3, L), valu("v_lshl_add_u32", T0, T1, 4, T0),
          valu("v_lshrrev_b32", T1, 1, W), valu("v_lshl_add_u32", T0, T1, 17, T0),
          valu("v_and_b32", T1, 1, W), valu("v_lshl_add_u32", v(V_DK), T1, 12, T0)]
    for rq in (1, 2, 3):
        c += [valu("v_xor_b32", v(V_DK + rq), 16 * rq, v(V_DK))]
    c += [valu("v_bfe_u32", T0, L, 2, 2), valu("v_and_b32", T1, 3, L), valu("v_lshlrev_b32", T1, 6, T1),
          valu("v_lshl_add_u32", T1, T0, 10, T1), valu("v_lshrrev_b32", T2, 5, L), valu("v_xor_b32", T2, T2, T0),
          valu("v_lshl_add_u32", T1, T2, 4, T1), valu("v_bfe_u32", T2, L, 4, 1),
          valu("v_lshl_add_u32", T1, T2, 3, T1), valu("v_lshrrev_b32", T3, 1, W),
          valu("v_lshl_add_u32", T1, T3, 13, T1), valu("v_add_u32", v(V_RK), 2 * 32768, T1),
          valu("v_xor_b32", v(V_RK + 1), 32, v(V_RK))]
    c += [valu("v_lshrrev_b32", T0, 4, L), valu("v_lshlrev_b32", T0, 10, T0),
          valu("v_bfe_u32", T1, L, 2, 2), valu("v_lshl_add_u32", T0, T1, 6, T0),
          valu("v_bfe_u32", T1, L, 4, 1), valu("v_lshl_add_u32", T0, T1, 5, T0),
          valu("v_and_b32", T1, 3, L), valu("v_lshl_add_u32", T0, T1, 3, T0),
          valu("v_lshl_add_u32", T0, T3, 13, T0), valu("v_add_u32", v(V_RV), 2 * 32768 + 16384, T0),
          valu("v_xor_b32", v(V_RV + 1), 32, v(V_RV))]
    c += [valu("v_mul_u32_u24", T0, 40960, T3), valu("v_and_b32", T1, 1, W), valu("v_mul_u32_u24", T1, 5120, T1),
          valu("v_lshl_add_u32", T0, L, 4, T0), valu("v_add_u32", v(V_ST), T0, T1)]
    c += [valu("v_mov_b32", v(V_T + 9), "0x3f803f80")]
    for i in range(4):
        c += [valu("v_accvgpr_write_b32", a(A_ONE + i), v(V_T + 9))]
    c += [salu("s_mul_i32", s(56), s(41), 327680)]
    add64(c, s(48), s(49), s(56))
    srd(c, S_X, s(48), s(49), 327680)
    c += [salu("s_lshl_b32", s(56), s(42), 9)]
    add64(c, s(54), s(55), s(56))
    c += [salu("s_sub_u32", s(57), 8388608, s(56))]
    srd(c, S_WQ, s(54), s(55), s(57))
    c += [salu("s_lshl_b32", s(56), s(41), 22), salu("s_lshl_b32", s(57), s(42), 18),
          salu("s_add_u32", s(56), s(56), s(57))]
    add64(c, s(50), s(51), s(56))
    srd(c, S_K, s(50), s(51), 262144)
    add64(c, s(52), s(53), s(56))
    srd(c, S_V, s(52), s(53), 262144)
    c += [salu("s_lshl_b32", s(56), s(40), 3), salu("s_add_u32", s(56), s(56), s(41)),
          salu("s_mul_i32", s(56), s(56), 1310720),
          salu("s_add_u32", s(58), s(S_WS), s(56)), salu("s_addc_u32", s(59), s(S_WS + 1), 0)]
    srd(c, S_O, s(58), s(59), 1310720)
    c += [salu("s_mul_i32", s(S_OFF), s(42), 81920),
          salu("s_mul_i32", s(S_LX), s(S_W), 5120),
          salu("s_lshl_b32", s(S_LW), s(S_W), 13), salu("s_add_u32", s(S_LW), s(S_LW), XB),
          salu("s_lshl_b32", s(S_LK), s(S_W), 12)]
    return c


def q_stage_ops(j):
    sl = (j % 3) * QSLOT
    setup = [salu("s_add_u32", s(S_T0), s(S_ROT), j & 7), salu("s_and_b32", s(S_T0), s(S_T0), 7)]
    if j & 8:
        setup += [salu("s_or_b32", s(S_T0), s(S_T0), 8)]
    setup += [salu("s_lshl_b32", s(S_KX), s(S_T0), 7), salu("s_lshl_b32", s(S_KW), s(S_T0), 19)]
    ops = []
    for n in range(8):
        st, gu, hf = n >> 2, (n >> 1) & 1, n & 1
        ops.append((salu("s_add_u32", "m0", s(S_LW), sl + n * 1024),
                    salu("s_add_u32", s(S_T1), s(S_KW), (32 * st + 16 * gu + 4 * hf) * 8192),
                    buf_dma(v(V_DW), s(S_WQ, 4), s(S_T1), 0, CFG["xw_flags"], tag=("q", j))))
    xo = []
    for t in range(5):
        xo.append((salu("s_add_u32", "m0", s(S_LX), sl + t * 1024),
                   salu("s_add_u32", s(S_T1), s(S_KX), t * 16384),
                   buf_dma(v(V_DX + (t & 1)), s(S_X, 4), s(S_T1), 0, CFG["xw_flags"], tag=("q", j))))
    order = [xo[0], ops[0], ops[1], xo[1], ops[2], ops[3], xo[2], ops[4], xo[3], ops[5], ops[6], xo[4], ops[7]]
    return setup, order


def kv_group(c, isv):
    sl = (c + 2) % 5
    sc = [salu("s_add_u32", "m0", s(S_LK), sl * 32768 + isv * 16384), salu("s_mov_b32", s(S_T1), c * 8192)]
    dm = [buf_dma(v(V_DK + (rq if not isv else 2 * (rq & 1))), s(S_V if isv else S_K, 4), s(S_T1), rq * 1024,
                  CFG["kv_flags"], tag=("v" if isv else "k", c)) for rq in range(4)]
    return sc, dm


def place_kv(G, groups, g0, step):
    g = g0
    assert g0 - 2 > getattr(G, "last_dma", -1), (g0, G.last_dma)
    for sc, dm in groups:
        G.put(g - 2, sc[0])
        G.put(g - 1, sc[1])
        for d in dm:
            G.last_dma = G.place(d, g, g + 3)
            g = G.last_dma + step
    return g


def acc_q(T, qb):
    return v(V_ACC + (qb * 8 + T) * 4, 4)


def k1_qproj():
    pre = []
    for j in range(3):
        setup, order = q_stage_ops(j)
        pre += setup
        for m0, so, dma in order:
            pre += [m0, so, dma]
    mf = []
    for j in range(16):
        for st in range(2):
            for T in range(8):
                f = (2 * j + st) * 8 + T
                for qq in range(5):
                    qb = qq if T % 2 == 0 else 4 - qq
                    d = acc_q(T, qb)
                    mf.append(mfma(d, a(A_WF + 4 * (f % 5), 4), a(A_XF + 20 * st + 4 * qb, 4),
                                   0 if (j == 0 and st == 0) else d))
    G = Gaps(mf)

    def a_reads(f):
        n, T = divmod(f, 8)
        j, st = divmod(n, 2)
        base = v(V_RW + 2 * (j % 3) + (T & 1))
        return [ds_read("ds_read_b64_tr_b16", a(A_WF + 4 * (f % 5) + 2 * hf, 2), base,
                        (T >> 2) * 8192 + st * 4096 + hf * 1024 + ((T >> 1) & 1) * 512) for hf in range(2)]

    def b_read(n, qb):
        j, st = divmod(n, 2)
        return ds_read("ds_read_b128", a(A_XF + 20 * st + 4 * qb, 4), v(V_RX + j % 3), qb * 2048 + st * 512)

    stamp(pre, 1)
    pre += [waitvm(lambda t: t == ("q", 0)), barrier()]
    stamp(pre, 2)
    pre += [b_read(0, 0)] + a_reads(0) + [b_read(0, qb) for qb in range(1, 5)]
    for f in (1, 2, 3):
        pre += a_reads(f)
    BAR = 62
    for f in range(4, 256):
        g = 5 * (f - 4)
        if f % 16 == 0:
            g = 80 * (f // 16 - 1) + BAR + 1
        G.put(g, *a_reads(f))
    for n in range(1, 32):
        for qb in range(5):
            g = 40 * (n - 1) + (12 + 5 * qb if n % 2 else BAR - 40 + 2 + 2 * qb)
            G.place(b_read(n, qb), g, g + 2)
    for j in range(16):
        g = 80 * j + BAR
        if j < 15:
            G.put(g, waitlds(), waitvm(lambda t, j=j: t == ("q", j + 1)), barrier())
        else:
            G.put(g, waitlds(), waitvm(lambda t: t == ("k", 0)), barrier())
        if j + 3 < 16:
            setup, order = q_stage_ops(j + 3)
            for i, o in enumerate(setup):
                G.put(g - 3 + i, o)
            for i, (m0, so, dma) in enumerate(order):
                gg = g + 5 + 6 * i
                G.put(gg - 2, m0)
                G.put(gg - 1, so)
                G.put(gg, dma)
    place_kv(G, [kv_group(0, 0), kv_group(0, 1)], 80 * 13 + BAR + 4, 8)
    place_kv(G, [kv_group(1, 0), kv_group(1, 1), kv_group(2, 0)], 80 * 14 + BAR + 4, 5)
    return pre + G.flatten()


def s_t(kt, qb):
    return V_S + (kt * 5 + qb) * 4


def k_reads(c, f):
    kt, u = divmod(f, 4)
    r = V_KF + 4 * (f % 4)
    return [ds_read("ds_read_b64", v(r + 2 * jj, 2), v(V_RK + jj), kt * 4096 + u * 256) for jj in range(2)]


def v_reads(c, T):
    r = V_VF + 4 * (T % 4)
    return [ds_read("ds_read_b64_tr_b16", v(r + 2 * kt, 2), v(V_RV + (T & 1)), kt * 4096 + (T >> 1) * 256)
            for kt in range(2)]


def ring_step(reg, c_next):
    if (c_next + 2) % 5 == 0:
        return valu("v_subrev_u32", v(reg), 4 * 32768, v(reg))
    return valu("v_add_u32", v(reg), 32768, v(reg))


def x_mfmas(c):
    out = []
    for f in range(8):
        kt, u = divmod(f, 4)
        for qq in range(5):
            qb = qq if f % 2 == 0 else 4 - qq
            d = v(s_t(kt, qb), 4)
            cc = d if u else (0 if c == 0 else v(V_NM + 4 * qb, 4))
            out.append(mfma(d, v(V_KF + 4 * (f % 4), 4), v(V_Q + (qb * 4 + u) * 4, 4), cc))
    return out


def p_reg(c, qb):
    return V_P + 20 * (c & 1) + 4 * qb


def y_mfmas(c):
    out = []
    for qb in range(5):
        d = a(A_L + 4 * qb, 4)
        out.append(mfma(d, a(A_ONE, 4), v(p_reg(c, qb), 4), d if c else 0))
    for T in range(8):
        for qq in range(5):
            qb = qq if T % 2 == 0 else 4 - qq
            d = a(A_O + (T * 5 + qb) * 4, 4)
            out.append(mfma(d, v(V_VF + 4 * (T % 4), 4), v(p_reg(c, qb), 4), d if c else 0))
    return out


def softmax_ops(c, kt):
    out = []
    for qb in range(5):
        r = s_t(kt, qb)
        ex = [valu("v_exp_f32", v(r + i), v(r + i)) for i in range(4)]
        cv = [valu("v_cvt_pk_bf16_f32", v(p_reg(c, qb) + 2 * kt + h), v(r + 2 * h), v(r + 2 * h + 1)) for h in range(2)]
        out.append((ex, cv))
    return out


def k1_convert_q():
    c = []
    for qb in range(5):
        for u in range(4):
            for h in range(2):
                r = V_ACC + (qb * 8 + 2 * u + h) * 4
                c += [valu("v_mul_f32", v(r + i), hex(SCALE), v(r + i)) for i in range(4)]
            for h in range(2):
                r = V_ACC + (qb * 8 + 2 * u + h) * 4
                c += [valu("v_cvt_pk_bf16_f32", v(V_Q + (qb * 4 + u) * 4 + 2 * h + i), v(r + 2 * i), v(r + 2 * i + 1))
                      for i in range(2)]
    return c


def k1_attention():
    c = []
    conv = k1_convert_q()
    early = [kv_group(2, 1), kv_group(3, 0), kv_group(3, 1), kv_group(4, 0), kv_group(4, 1)]
    head = []
    for f in range(3):
        head += k_reads(0, f)
    pos = 8
    for sc, dm in early:
        conv[pos:pos] = sc
        pos += 8
        for d in dm:
            conv.insert(pos, d)
            pos += 10
    cut = max(i for i, x in enumerate(conv) if x.uses & regs_of(v(V_KF, 12))) + 1
    c += conv[:cut] + head + conv[cut:]
    stamp(c, 3)
    G = Gaps(x_mfmas(0))
    for f in range(3, 8):
        G.put(5 * (f - 3), *k_reads(0, f))
    G.put(26, ring_step(V_RK, 1), ring_step(V_RK + 1, 1))
    c += G.flatten()
    T = V_T
    for qb in range(5):
        r0, r1, m = s_t(0, qb), s_t(1, qb), V_NM + 4 * qb
        c += [valu("v_max3_f32", v(m), v(r0), v(r0 + 1), v(r0 + 2)),
              valu("v_max3_f32", v(m + 1), v(r0 + 3), v(r1), v(r1 + 1)),
              valu("v_max3_f32", v(m), v(m), v(r1 + 2), v(r1 + 3)),
              valu("v_max_f32", v(m), v(m), v(m + 1))]
    for op in ("v_permlane32_swap_b32", "v_permlane16_swap_b32"):
        for qb in range(5):
            m = V_NM + 4 * qb
            c += [valu("v_mov_b32", v(m + 1), v(m))]
        for qb in range(5):
            m = V_NM + 4 * qb
            c += [perm(op, v(m), v(m + 1))]
        for qb in range(5):
            m = V_NM + 4 * qb
            c += [valu("v_max_f32", v(m), v(m), v(m + 1))]
    for qb in range(5):
        m = V_NM + 4 * qb
        c += [valu("v_sub_f32", v(m + i), 0, v(m)) for i in (3, 2, 1, 0)]
    c += [waitvm(lambda t: t in (("k", 1), ("v", 0))), waitlds(), barrier()]
    for f in range(3):
        c += k_reads(1, f)
    for kt in range(2):
        for qb in range(5):
            r = s_t(kt, qb)
            c += [valu("v_add_f32", v(r + i), v(V_NM + 4 * qb), v(r + i)) for i in range(4)]
    for kt in range(2):
        for ex, cv in softmax_ops(0, kt):
            c += ex
        for ex, cv in softmax_ops(0, kt):
            c += cv
    stamp(c, 4)
    mf = []
    start = []
    for p in range(16):
        start.append(len(mf))
        if p < 15:
            mf += x_mfmas(p + 1)
        mf += y_mfmas(p)
    G = Gaps(mf)
    ypos = [start[p] + (40 if p < 15 else 0) for p in range(16)]
    for p in range(16):
        g0, y0 = start[p], ypos[p]
        if p < 15:
            for f in range(3, 8):
                G.put(g0 + 5 * (f - 3), *k_reads(p + 1, f))
        for T in range(8):
            g = y0 - 10 + 5 * T
            if p == 15 and T < 2:
                continue
            G.put(g, *v_reads(p, T))
        if p < 15:
            bar = y0 + 29
            need = [("k", p + 2), ("v", p + 1)]
            G.put(bar, waitlds(), waitvm(lambda t, need=need: t in need), barrier())
            if p < 14:
                G.put(g0 + 22, ring_step(V_RK, p + 2))
                G.put(g0 + 23, ring_step(V_RK + 1, p + 2))
                for f in range(3):
                    G.put(bar + 1 + 5 * f, *k_reads(p + 2, f))
            G.put(y0 + 27, ring_step(V_RV, p + 1))
            G.put(y0 + 28, ring_step(V_RV + 1, p + 1))
            if p == 14:
                G.put(bar + 6, *v_reads(15, 0))
                G.put(bar + 11, *v_reads(15, 1))
    place_kv(G, [kv_group(5, 0)], 3, 9)
    for p in range(15):
        groups = []
        if p + 5 < 16:
            groups.append(kv_group(p + 5, 1))
        if p + 6 < 16:
            groups.append(kv_group(p + 6, 0))
        if groups:
            place_kv(G, groups, ypos[p] + 33, 9)
    ops = []
    for p in range(15):
        g0, nxt = start[p], start[p + 1]
        for kt in range(2):
            for qb, (ex, cv) in enumerate(softmax_ops(p + 1, kt)):
                done = g0 + 20 * kt + 15 + (4 - qb)
                hi = ypos[p + 1] + qb - 2
                if p < 14:
                    hi = min(hi, nxt + 20 * kt + qb - 1)
                base = len(ops)
                for i, e in enumerate(ex):
                    ops.append(dict(ins=e, lo=done + 4, hi=hi - 1 - (3 - i)))
                for h, x in enumerate(cv):
                    ops.append(dict(ins=x, lo=done + 4, hi=hi, deps=[base + 2 * h, base + 2 * h + 1]))
    over = G.schedule(ops)
    print(f"; attention: {over} softmax ops placed in full gaps", file=sys.stderr)
    c += G.flatten()
    stamp(c, 5)
    T = V_T
    for qb in range(5):
        c += [valu("v_accvgpr_read_b32", v(T + qb), a(A_L + 4 * qb))]
    for qb in range(5):
        c += [valu("v_rcp_f32", v(T + qb), v(T + qb))]
    B0 = V_S
    n = 0
    for u in range(4):
        c += [salu("s_add_u32", s(S_T1), s(S_OFF), u * 10240)]
        for qb in range(5):
            tb = B0 + 12 * (n % 8)
            n += 1
            for h in range(2):
                c += [valu("v_accvgpr_read_b32", v(tb + 4 * h + i), a(A_O + ((2 * u + h) * 5 + qb) * 4 + i))
                      for i in range(4)]
            c += [valu("v_mul_f32", v(tb + i), v(T + qb), v(tb + i)) for i in range(8)]
            c += [valu("v_cvt_pk_bf16_f32", v(tb + 8 + i), v(tb + 2 * i), v(tb + 2 * i + 1)) for i in range(4)]
            if qb < 4:
                c += [buf_store("buffer_store_dwordx4", v(tb + 8, 4), v(V_ST), s(S_O, 4), s(S_T1), qb * 1024,
                                CFG["o_st_flags"])]
            else:
                c += [salu("s_add_u32", s(S_T0), s(S_T1), 4096),
                      buf_store("buffer_store_dwordx4", v(tb + 8, 4), v(V_ST), s(S_O, 4), s(S_T0), 0,
                                CFG["o_st_flags"])]
    stamp(c, 6)
    if CFG["stamps"]:
        c += [wait(vm=0)]
    stamp(c, 7)
    return c


def kernel1():
    c = []
    stamp(c, 0)
    c += k1_prologue() + k1_qproj() + k1_attention()
    store_stamps(c, 8, s(S_WS), s(S_WS + 1), 0x4000000, s(S_W))
    c += [label("L_k1_end"), raw("s_endpgm")]
    return c


S2_O, S2_WO, S2_OUT = 4, 8, 12
S2_W, S2_ROT, S2_KO, S2_KW, S2_T0, S2_T1, S2_L, S2_KB = 24, 25, 26, 27, 28, 29, 30, 31
V2_DO, V2_DW, V2_RW, V2_ST, V2_RED, V2_T = 1, 3, 11, 13, 14, 22
A2_OF, A2_WF = 0, 64


def k2_stage_setup(n):
    c = [salu("s_add_u32", s(S2_T0), s(S2_ROT), n & 7), salu("s_and_b32", s(S2_T0), s(S2_T0), 7),
         salu("s_add_u32", s(S2_T0), s(S2_T0), s(S2_KB))]
    if n >> 3:
        c += [salu("s_add_u32", s(S2_T0), s(S2_T0), (n >> 3) * 8)]
    return c


def k2_wo_stage(n):
    sc = k2_stage_setup(n) + [salu("s_lshl_b32", s(S2_KW), s(S2_T0), 16)]
    groups = []
    for kt in range(2):
        m0 = salu("s_add_u32", "m0", s(S2_L), (n % 5) * 8192 + kt * 4096)
        dm = [buf_dma(v(V2_DW + kt * 4 + rq), s(S2_WO, 4), s(S2_KW), rq * 1024, CFG["wo_flags"], tag=("w", n))
              for rq in range(4)]
        groups.append((m0, dm))
    return sc, groups


def k2_o_stage(n):
    sc = k2_stage_setup(n) + [salu("s_mul_i32", s(S2_KO), s(S2_T0), 10240)]
    ld = [buf_load("buffer_load_dwordx4", a(A2_OF + 20 * (n % 3) + 4 * qb, 4), v(V2_DO + (qb >> 2)), s(S2_O, 4),
                   s(S2_KO), (qb & 3) * 1024, CFG["o_ld_flags"], tag=("o", n)) for qb in range(5)]
    return sc, ld


def kernel2():
    c = []
    stamp(c, 0)
    c += [salu("s_cmp_ge_u32", s(2), 256), raw("s_cbranch_scc1 L_k2_end", "branch", uses={"scc"})]
    c += [salu("s_and_b32", s(46), s(2), 7), salu("s_lshr_b32", s(44), s(2), 3),
          salu("s_lshr_b32", s(40), s(46), 2), salu("s_mul_i32", s(45), s(40), 40),
          salu("s_add_u32", s(48), s(0), s(45)), salu("s_addc_u32", s(49), s(1), 0),
          smem("s_load_dwordx2", s(50, 2), s(48, 2), 32),
          smem("s_load_dwordx2", s(52, 2), s(0, 2), 80),
          smem("s_load_dwordx2", s(S_WS, 2), s(0, 2), 96),
          salu("s_bfe_u32", s(41), s(46), "0x10001"), salu("s_lshl_b32", s(41), s(41), 2),
          salu("s_and_b32", s(45), s(44), 3), salu("s_add_u32", s(41), s(41), s(45)),
          salu("s_bfe_u32", s(43), s(44), "0x10002"),
          salu("s_and_b32", s(42), s(46), 1), salu("s_lshl_b32", s(42), s(42), 2),
          salu("s_lshr_b32", s(56), s(44), 3), salu("s_add_u32", s(42), s(42), s(56)),
          salu("s_and_b32", s(57), s(44), 7), salu("s_lshl_b32", s(56), s(56), 1),
          salu("s_add_u32", s(S2_ROT), s(56), s(57))]
    L, W, T0, T1, T2 = v(V2_T), v(V2_T + 1), v(V2_T + 2), v(V2_T + 3), v(V2_T + 4)
    c += [valu("v_and_b32", L, 63, v(0)), valu("v_lshrrev_b32", W, 6, v(0)),
          valu("v_readfirstlane_b32", s(S2_W), W),
          valu("v_lshlrev_b32", v(V2_DO), 4, L), valu("v_add_u32", v(V2_DO + 1), 4096, v(V2_DO))]
    c += [valu("v_lshrrev_b32", T0, 4, L), valu("v_add_u32", T0, T0, W), valu("v_and_b32", T0, 3, T0),
          valu("v_lshlrev_b32", T0, 6, T0), valu("v_bfe_u32", T1, L, 2, 2), valu("v_lshl_add_u32", T0, T1, 11, T0),
          valu("v_and_b32", T1, 3, L), valu("v_lshl_add_u32", T0, T1, 4, T0), valu("v_xor_b32", T1, 32, T0)]
    for kt in range(2):
        for rq in range(4):
            c += [valu("v_add_u32", v(V2_DW + kt * 4 + rq), (16 * kt + 4 * rq) * 2048 - rq * 1024,
                       T1 if rq & 1 else T0)]
    c += [valu("v_lshrrev_b32", T0, 4, L), valu("v_lshlrev_b32", T0, 10, T0),
          valu("v_bfe_u32", T1, L, 2, 2), valu("v_lshl_add_u32", T0, T1, 6, T0),
          valu("v_bfe_u32", T1, L, 4, 1), valu("v_lshl_add_u32", T0, T1, 5, T0),
          valu("v_and_b32", T1, 3, L), valu("v_lshl_add_u32", T0, T1, 3, T0),
          valu("v_mul_u32_u24", T1, 40960, W), valu("v_add_u32", v(V2_RW), T0, T1),
          valu("v_xor_b32", v(V2_RW + 1), 32, v(V2_RW))]
    c += [valu("v_and_b32", T0, 15, L), valu("v_lshlrev_b32", T0, 12, T0), valu("v_lshrrev_b32", T1, 4, L),
          valu("v_lshl_add_u32", T0, T1, 4, T0), valu("v_lshl_add_u32", v(V2_ST), W, 6, T0)]
    c += [valu("v_mul_u32_u24", T0, 30720, W), valu("v_lshl_add_u32", v(V2_RED), L, 4, T0)]
    for P in (1, 2, 3):
        c += [valu("v_add_u32", T0, P, W), valu("v_and_b32", T0, 3, T0), valu("v_mul_u32_u24", T0, 30720, T0),
              valu("v_lshl_add_u32", T0, L, 4, T0), valu("v_add_u32", v(V2_RED + P), (P - 1) * 10240, T0)]
    c += [salu("s_lshl_b32", s(56), s(40), 3), salu("s_add_u32", s(56), s(56), s(41)),
          salu("s_mul_i32", s(56), s(56), 1310720), salu("s_mul_i32", s(57), s(43), 5120),
          salu("s_add_u32", s(56), s(56), s(57)),
          salu("s_add_u32", s(58), s(S_WS), s(56)), salu("s_addc_u32", s(59), s(S_WS + 1), 0),
          salu("s_sub_u32", s(57), 1310720, s(57))]
    srd(c, S2_O, s(58), s(59), s(57))
    c += [salu("s_lshl_b32", s(56), s(42), 8)]
    add64(c, s(50), s(51), s(56))
    c += [salu("s_sub_u32", s(57), 8388608, s(56))]
    srd(c, S2_WO, s(50), s(51), s(57))
    c += [salu("s_mul_i32", s(56), s(41), 160), salu("s_mul_i32", s(57), s(43), 80),
          salu("s_add_u32", s(56), s(56), s(57)), salu("s_lshl_b32", s(56), s(56), 12),
          salu("s_lshl_b32", s(57), s(40), 11), salu("s_add_u32", s(56), s(56), s(57)),
          salu("s_lshl_b32", s(57), s(42), 8), salu("s_add_u32", s(56), s(56), s(57))]
    add64(c, s(52), s(53), s(56))
    c += [salu("s_sub_u32", s(57), 5242880, s(56))]
    srd(c, S2_OUT, s(52), s(53), s(57))
    c += [salu("s_mul_i32", s(S2_L), s(S2_W), 40960), salu("s_lshl_b32", s(S2_KB), s(S2_W), 5)]
    for n in range(4):
        sc, groups = k2_wo_stage(n)
        c += sc
        for m0, dm in groups:
            c += [m0] + dm
        if n < 2:
            sc, ld = k2_o_stage(n)
            c += sc + ld

    def w_reads(f):
        n, T = divmod(f, 8)
        return [ds_read("ds_read_b64_tr_b16", a(A2_WF + 4 * (f % 5) + 2 * kt, 2), v(V2_RW + (T & 1)),
                        (n % 5) * 8192 + kt * 4096 + (T >> 1) * 256) for kt in range(2)]

    acc = lambda T, qb: V_ACC + (T * 5 + qb) * 4
    mf = []
    for n in range(32):
        for T in range(8):
            f = n * 8 + T
            for qq in range(5):
                qb = qq if T % 2 == 0 else 4 - qq
                d = v(acc(T, qb), 4)
                mf.append(mfma(d, a(A2_WF + 4 * (f % 5), 4), a(A2_OF + 20 * (n % 3) + 4 * qb, 4), d if n else 0))
    G = Gaps(mf)
    stamp(c, 1)
    c += [waitvm(lambda t: t == ("w", 0))]
    stamp(c, 2)
    for f in range(4):
        c += w_reads(f)
    for f in range(4, 256):
        g = 5 * (f - 4)
        if f % 8 == 0:
            G.put(g, waitvm(lambda t, n=f // 8: t == ("w", n)))
        G.put(g, *w_reads(f))
    for n in range(32):
        g0 = 40 * n
        vm = []
        if n + 2 < 32:
            sc, ld = k2_o_stage(n + 2)
            for i, o in enumerate(sc):
                G.put(max(g0 - 5 + i, i), o) if n else G.put(i, o)
            vm += [(None, x) for x in ld]
        pos = g0 + 1 if n else 6
        for _, x in vm:
            pos = G.place(x, pos, pos + 2) + 3
        if n + 4 < 32:
            sc, groups = k2_wo_stage(n + 4)
            for i, o in enumerate(sc):
                G.put(g0 + 8 + i, o)
            pos = max(pos, g0 + 16)
            for m0, dm in groups:
                G.put(pos - 1, m0)
                for d in dm:
                    pos = G.place(d, pos, pos + 2) + 2
                pos += 1
    c += G.flatten()
    stamp(c, 3)
    c += [barrier()]
    for P in (1, 2, 3):
        for h in range(2):
            for qb in range(5):
                c += [ds_write("ds_write_b128", v(V2_RED + P), v(acc(2 * P + h, qb), 4), (h * 5 + qb) * 1024)]
        c += [wait(lg=4)]
    c += [waitlds(), barrier()]
    tmp = V_ACC + 40
    rd = lambda i: ds_read("ds_read_b128", v(tmp + i * 4, 4), v(V2_RED), (i // 10) * 10240 + (i % 10) * 1024)
    c += [rd(i) for i in range(10)]
    for i in range(30):
        if i + 10 < 30:
            c += [rd(i + 10)]
        t = i % 10
        c += [valu("v_add_f32", v(V_ACC + 4 * t + k), v(V_ACC + 4 * t + k), v(tmp + i * 4 + k)) for k in range(4)]
    PK = 32
    for qb in range(5):
        for h in range(2):
            r = acc(h, qb)
            c += [valu("v_cvt_pk_bf16_f32", v(PK + 4 * qb + 2 * h + i), v(r + 2 * i), v(r + 2 * i + 1)) for i in range(2)]
    for op in ("v_permlane32_swap_b32", "v_permlane16_swap_b32"):
        for qb in range(5):
            c += [perm(op, v(PK + 4 * qb + i), v(PK + 4 * qb + 2 + i)) for i in range(2)]
    for qb in range(5):
        c += [salu("s_mov_b32", s(S2_T1), qb * 65536),
              buf_store("buffer_store_dwordx4", v(PK + 4 * qb, 4), v(V2_ST), s(S2_OUT, 4), s(S2_T1), 0)]
    stamp(c, 4)
    if CFG["stamps"]:
        c += [wait(vm=0)]
    stamp(c, 5)
    store_stamps(c, 6, s(S_WS), s(S_WS + 1), 0x4100000, s(S2_W))
    c += [label("L_k2_end"), raw("s_endpgm")]
    return c


def finish(code, name):
    code = insert_waits(code)
    code, pad = fix_hazards(code)
    n = {k: sum(1 for i in code if i.kind == k) for k in ("mfma", "wait", "nop", "barrier")}
    print(f"; {name}: {len(code)} instrs, {n}, padded {pad} states", file=sys.stderr)
    return text(code)


KD = """.amdhsa_kernel {k}
  .amdhsa_next_free_vgpr 512
  .amdhsa_next_free_sgpr 102
  .amdhsa_accum_offset 256
  .amdhsa_group_segment_fixed_size 0
  .amdhsa_kernarg_size 104
  .amdhsa_user_sgpr_count 2
  .amdhsa_user_sgpr_kernarg_segment_ptr 1
  .amdhsa_system_sgpr_workgroup_id_x 1
.end_amdhsa_kernel
"""


def build(**cfg):
    CFG.update(cfg)
    ref = open(f"cdna_kernels/{NAME}.s.ref").read().splitlines()
    head = [l for l in ref if l.startswith(";") and "@launch" not in l and not l.startswith("; Override")
            and not l.startswith("; grid=ceil")]
    kernels = [("qattn_kernel", kernel1()), ("oproj_kernel", kernel2())]
    out = "\n".join(head) + "\n"
    for k, _ in kernels:
        out += f"; @launch kernel={k} grid=(256,1,1) block=(256,1,1) lds=163840\n"
    out += '.amdgcn_target "amdgcn-amd-amdhsa--gfx950"\n.text\n'
    for k, code in kernels:
        out += f".globl {k}\n.p2align 8\n.type {k},@function\n{k}:\n" + finish(code, k)
    out += '.section .rodata,"a"\n'
    for k, _ in kernels:
        out += ".p2align 6\n" + KD.format(k=k)
    return out


if __name__ == "__main__":
    cfg = {}
    path = f"cdna_kernels/{NAME}.s"
    for arg in sys.argv[1:]:
        if "=" in arg:
            k, val = arg.split("=", 1)
            cfg[k] = {"True": True, "False": False}.get(val, val)
        else:
            path = arg
    open(path, "w").write(build(**cfg))
```

```python
import re


def R(prefix, lo, n=1):
    if n == 1:
        return f"{prefix}{lo}"
    return f"{prefix}[{lo}:{lo + n - 1}]"


_REG = re.compile(r"^-?(?:abs\()?([vas])(\d+)\)?$|^-?([vas])\[(\d+):(\d+)\]$")


def regs_of(op):
    op = str(op).strip()
    if op in ("m0", "vcc", "exec", "scc"):
        return {op}
    m = _REG.match(op)
    if not m:
        return set()
    if m.group(1):
        return {f"{m.group(1)}{m.group(2)}"}
    return {f"{m.group(3)}{i}" for i in range(int(m.group(4)), int(m.group(5)) + 1)}


class Ins:
    __slots__ = ("text", "kind", "defs", "uses", "tag", "need", "cost", "srcc", "wide")

    def __init__(self, text, kind, defs=(), uses=(), tag=None, need=None, srcc=(), wide=False):
        self.text = text
        self.kind = kind
        self.defs = set(defs)
        self.uses = set(uses)
        self.tag = tag
        self.need = need
        self.srcc = set(srcc)
        self.wide = wide
        self.cost = {"trans": 8, "valu": 4, "ds_r": 4, "ds_w": 4, "vm_ld": 4, "vm_dma": 4, "vm_st": 4,
                     "perm": 4}.get(kind, 0)

    def __repr__(self):
        return self.text


def _ru(*ops):
    s = set()
    for o in ops:
        s |= regs_of(o)
    return s


def mfma(d, a, b, c):
    return Ins(f"v_mfma_f32_16x16x32_bf16 {d}, {a}, {b}, {c}", "mfma", _ru(d), _ru(a, b, c), srcc=_ru(c))


_TRANS = ("v_exp_f32", "v_rcp_f32", "v_log_f32", "v_rsq_f32", "v_sqrt_f32")


def valu(op, d, *src, rmw=False, mods=""):
    kind = "trans" if op in _TRANS else "valu"
    uses = _ru(*src)
    if rmw:
        uses |= _ru(d)
    defs = _ru(d)
    if op.startswith("v_cndmask") and len(src) == 2:
        uses.add("vcc")
    txt = f"{op} {d}, " + ", ".join(str(s) for s in src) + (f" {mods}" if mods else "")
    return Ins(txt, kind, defs, uses)


def perm(op, a, b):
    return Ins(f"{op} {a}, {b}", "perm", _ru(a, b), _ru(a, b))


_NOSCC = ("s_mov_b32", "s_mov_b64", "s_mul_i32", "s_mul_hi_u32", "s_cselect_b32", "s_cselect_b64", "s_movk_i32",
          "s_getpc_b64", "s_getreg_b32")


def salu(op, d, *src):
    uses = _ru(*src)
    if op.startswith("s_cmp") or op.startswith("s_bitcmp"):
        return Ins(f"{op} {d}, " + ", ".join(str(s) for s in src), "salu", {"scc"}, uses | _ru(d))
    defs = _ru(d)
    if op not in _NOSCC:
        defs.add("scc")
    if op in ("s_cselect_b32", "s_cselect_b64", "s_addc_u32", "s_subb_u32"):
        uses.add("scc")
    if op in ("s_addk_i32", "s_mulk_i32"):
        uses |= _ru(d)
    if "saveexec" in op:
        defs.add("exec")
        uses.add("exec")
    txt = f"{op} {d}" + ("".join(f", {s}" for s in src))
    return Ins(txt, "salu", defs, uses)


def smem(op, d, base, off):
    return Ins(f"{op} {d}, {base}, {off}", "smem", _ru(d), _ru(base, off))


def ds_read(op, d, addr, off=0, tag=None):
    assert 0 <= off < 65536, off
    return Ins(f"{op} {d}, {addr}" + (f" offset:{off}" if off else ""), "ds_r", _ru(d), _ru(addr), tag=tag)


def ds_write(op, addr, data, off=0, tag=None):
    assert 0 <= off < 65536, off
    return Ins(f"{op} {addr}, {data}" + (f" offset:{off}" if off else ""), "ds_w", (), _ru(addr, data), tag=tag)


def buf_dma(voff, srd, soff, imm=0, flags="", tag=None):
    assert 0 <= imm < 4096
    t = f"buffer_load_dwordx4 {voff}, {srd}, {soff} offen" + (f" offset:{imm}" if imm else "") + \
        (f" {flags}" if flags else "") + " lds"
    return Ins(t, "vm_dma", (), _ru(voff, srd, soff) | {"m0"}, tag=tag)


def buf_load(op, d, voff, srd, soff, imm=0, flags="", tag=None):
    assert 0 <= imm < 4096
    t = f"{op} {d}, {voff}, {srd}, {soff} offen" + (f" offset:{imm}" if imm else "") + (f" {flags}" if flags else "")
    return Ins(t, "vm_ld", _ru(d), _ru(voff, srd, soff), tag=tag)


def buf_store(op, data, voff, srd, soff, imm=0, flags="", tag=None):
    assert 0 <= imm < 4096
    t = f"{op} {data}, {voff}, {srd}, {soff} offen" + (f" offset:{imm}" if imm else "") + (f" {flags}" if flags else "")
    return Ins(t, "vm_st", (), _ru(data, voff, srd, soff), tag=tag, wide=op.endswith(("x3", "x4")))


def raw(text, kind="other", defs=(), uses=()):
    return Ins(text, kind, defs, uses)


def barrier():
    return Ins("s_barrier", "barrier")


def label(name):
    return Ins(f"{name}:", "label")


def waitvm(pred):
    return Ins("; waitvm", "waitvm", need=pred)


def waitlds(pred=lambda t: True):
    return Ins("; waitlds", "waitlds", need=pred)


def nop(n):
    return Ins(f"s_nop {n - 1}", "nop", tag=n)


VM = ("vm_ld", "vm_dma", "vm_st")
LG = ("ds_r", "ds_w")


def _wait_text(vm, lg):
    parts = []
    if vm is not None:
        assert vm <= 63
        parts.append(f"vmcnt({vm})")
    if lg is not None:
        parts.append(f"lgkmcnt({min(lg, 15)})")
    return "s_waitcnt " + " ".join(parts)


class WaitState:
    def __init__(self):
        self.vm = []
        self.lg = []
        self.sm = []

    def apply(self, vm, lg):
        if vm is not None:
            self.vm = self.vm[len(self.vm) - vm:] if vm < len(self.vm) else self.vm
            if vm == 0:
                self.vm = []
        if lg is not None:
            if lg == 0:
                self.lg = []
                self.sm = []
            elif not self.sm and lg < len(self.lg):
                self.lg = self.lg[len(self.lg) - lg:]


def insert_waits(code, st=None, hoist=True):
    st = st or WaitState()
    later = {}
    for i, ins in enumerate(code):
        if ins.kind in VM and ins.tag is not None:
            later[ins.tag] = i
    for i, ins in enumerate(code):
        if ins.kind == "waitvm":
            late = [t for t, j in later.items() if j > i and ins.need(t)]
            assert not late, f"loads {late} are issued after the wait that should cover them"
    out = []
    seq = 0
    shadow = None
    shadow_seq = None
    for ins in code:
        touched = ins.uses | ins.defs
        vm_need = None
        lg_need = None
        if ins.kind == "waitvm":
            for i, (o, _) in enumerate(st.vm):
                if ins.need(o.tag):
                    vm_need = i
        elif ins.kind == "waitlds":
            for i, (o, _) in enumerate(st.lg):
                if ins.need(o.tag):
                    lg_need = i
        else:
            for i, (o, _) in enumerate(st.vm):
                if o.defs & touched:
                    vm_need = i
            for i, (o, _) in enumerate(st.lg):
                if o.defs & touched:
                    lg_need = i
        sm_need = any(o.defs & touched for o in st.sm)
        if vm_need is not None or lg_need is not None or sm_need:
            at = len(out)
            limit = None
            if hoist and ins.kind == "mfma" and shadow is not None and not sm_need:
                ok = True
                if vm_need is not None and st.vm[vm_need][1] >= shadow_seq:
                    ok = False
                if lg_need is not None and st.lg[lg_need][1] >= shadow_seq:
                    ok = False
                if ok:
                    at, limit = shadow, shadow_seq
            def count(q, i):
                later = q[i + 1:]
                return len([1 for _, s in later if limit is None or s < limit])
            vm = count(st.vm, vm_need) if vm_need is not None else None
            lg = count(st.lg, lg_need) if lg_need is not None else None
            if sm_need or (lg is not None and st.sm):
                lg = 0
            if lg is not None and lg > 15:
                lg = 15
            w = Ins(_wait_text(vm, lg), "wait", tag=(vm, lg))
            out.insert(at, w)
            if vm_need is not None:
                st.vm = st.vm[vm_need + 1:]
            if lg == 0 and limit is None:
                st.lg = []
                st.sm = []
            elif lg_need is not None:
                st.lg = st.lg[lg_need + 1:]
        if ins.kind in ("waitvm", "waitlds"):
            continue
        if ins.kind == "wait":
            st.apply(*ins.tag)
        out.append(ins)
        if ins.kind in VM:
            st.vm.append((ins, seq))
            seq += 1
            assert len(st.vm) <= 63, "vmcnt overflow"
        elif ins.kind in LG:
            st.lg.append((ins, seq))
            seq += 1
        elif ins.kind == "smem":
            st.sm.append(ins)
        if ins.kind == "mfma":
            shadow, shadow_seq = len(out), seq
        elif ins.kind in ("label", "branch", "barrier"):
            shadow = None
    merged = []
    for ins in out:
        if ins.kind == "wait" and merged and merged[-1].kind == "wait":
            pick = lambda x, y: y if x is None else x if y is None else min(x, y)
            vm, lg = (pick(x, y) for x, y in zip(merged[-1].tag, ins.tag))
            merged[-1] = Ins(_wait_text(vm, lg), "wait", tag=(vm, lg))
        else:
            merged.append(ins)
    return merged


def wait(vm=None, lg=None):
    return Ins(_wait_text(vm, lg), "wait", tag=(vm, lg))


VALUISH = ("valu", "trans", "perm")


def _required(prev, cur):
    n = 0
    pk, ck = prev.kind, cur.kind
    vdefs = {r for r in prev.defs if r[0] in "va" and r not in ("vcc",)}
    sdefs = {r for r in prev.defs if (r[0] == "s" and r != "scc") or r == "vcc"}
    if pk in VALUISH:
        if ck == "mfma" and vdefs & cur.uses:
            n = max(n, 2)
        if ck == "perm" and vdefs & cur.uses:
            n = max(n, 2)
        if ("readfirstlane" in cur.text or "readlane" in cur.text) and vdefs & cur.uses:
            n = max(n, 1)
        if "dpp" in cur.text or "row_" in cur.text or "quad_perm" in cur.text:
            if vdefs & cur.uses:
                n = max(n, 2)
        if ck in VM and sdefs & cur.uses:
            n = max(n, 5)
        if ck in VALUISH and sdefs & cur.uses:
            n = max(n, 2)
        if ck == "salu" and sdefs & cur.uses:
            n = max(n, 1)
        if ck in ("branch", "xbranch") and "vcc" in sdefs and "vcc" in cur.uses:
            n = max(n, 5)
        if pk == "trans" and ck in VALUISH and vdefs & cur.uses:
            n = max(n, 1)
        if "exec" in prev.defs and ck == "mfma":
            n = max(n, 4)
    if pk == "mfma":
        if ck == "mfma":
            ab = cur.uses - cur.srcc
            if prev.defs & ab:
                n = max(n, 8)
            if prev.defs & cur.srcc and prev.defs != cur.srcc:
                n = max(n, 6)
        elif prev.defs & (cur.uses | cur.defs):
            n = max(n, 8)
        if ck in VALUISH and prev.srcc & cur.defs:
            n = max(n, 3)
    if pk == "salu" and "m0" in prev.defs and ck == "vm_dma":
        n = max(n, 1)
    if pk == "vm_st" and prev.wide and ck in VALUISH and (prev.uses & cur.defs):
        n = max(n, 2)
    if pk == "vm_st" and prev.wide and ck in ("ds_r", "vm_ld", "mfma") and (prev.uses & cur.defs):
        n = max(n, 1)
    return n


def fix_hazards(code, history=()):
    out = []
    hist = [i for i in history if i.kind not in ("label", "xlabel")][-12:]
    padded = 0
    for ins in code:
        if ins.kind in ("label", "xlabel", "mark"):
            out.append(ins)
            continue
        need = 0
        dist = 0
        for p in reversed(hist):
            r = _required(p, ins)
            if r > dist:
                need = max(need, r - dist)
            dist += p.tag if p.kind == "nop" else 1
            if dist >= 12:
                break
        if need:
            n = nop(need)
            out.append(n)
            hist.append(n)
            padded += need
        out.append(ins)
        hist.append(ins)
        hist = hist[-14:]
    return out, padded


def text(code):
    return "\n".join(("" if i.kind in ("label", "xlabel") else "    ") + i.text for i in code) + "\n"


class Gaps:
    def __init__(self, mfmas):
        self.m = list(mfmas)
        self.s = [[] for _ in self.m]
        self.v = [[] for _ in self.m]

    def load(self, g):
        busy = 4 if any(i.kind == "barrier" for i in self.s[g]) else 0
        return sum(i.cost for i in self.v[g]) + busy

    def put(self, g, *ins):
        for i in ins:
            (self.v if i.cost else self.s)[g].append(i)

    def put_seq(self, g, *ins):
        self.v[g].extend(ins)

    def place(self, ins, lo, hi, cap=8):
        hi = min(hi, len(self.m) - 1)
        for g in range(lo, hi + 1):
            if self.load(g) + ins.cost <= cap:
                self.put(g, ins)
                return g
        g = min(range(lo, hi + 1), key=self.load)
        self.put(g, ins)
        return g

    def with_scalars(self, sc, op, g, prev):
        g = self.place(op, max(g, prev + (2 if sc else 1)), g + 6)
        free = [k for k in range(prev + 1, g) if self.load(k) < 8 and
                not any(i.kind == "barrier" for i in self.s[k])] or list(range(prev + 1, g))
        free = free[-len(sc):] if sc else []
        for i, o in enumerate(sc):
            self.put(free[i * len(free) // len(sc)], o)
        return g

    def schedule(self, ops, cap=8):
        at = [None] * len(ops)
        todo = set(range(len(ops)))
        over = 0
        g = min(o["lo"] for o in ops)
        while todo:
            assert g < len(self.m), "ran out of gaps"
            ready = [i for i in todo if ops[i]["lo"] <= g and
                     all(at[d] is not None and at[d] < g for d in ops[i].get("deps", ()))]
            ready.sort(key=lambda i: (ops[i]["hi"], i))
            for i in ready:
                fits = self.load(g) + ops[i]["ins"].cost <= cap
                if fits or ops[i]["hi"] <= g:
                    over += not fits
                    self.put(g, ops[i]["ins"])
                    at[i] = g
                    todo.discard(i)
            g += 1
        late = [i for i in range(len(ops)) if at[i] > ops[i]["hi"]]
        assert not late, [(ops[i]["ins"], at[i], ops[i]["hi"]) for i in late]
        return over

    def flatten(self):
        out = []
        for m, s, v in zip(self.m, self.s, self.v):
            out.append(m)
            out.extend(s)
            out.extend(v)
        return out
```

```python
import struct
import sys

sys.path.insert(0, "tools")
from asmir import *

NAME = "concat_heads__mha_block_cached__mha_block_cached__near_ridge"
SCALE = struct.unpack("<I", struct.pack("<f", 128 ** -0.5 * 1.4426950408889634))[0]

CFG = dict(
    kv_flags="nt",
    xw_flags="",
    wo_flags="",
    o_st_flags="",
    o_ld_flags="sc1",
    stamps=False,
    qrot=2,
    orot=8,
    touch=True,
    kv_q=16,
    kv_c=6,
    kv_x=6,
    kv_end=1160,
    stash="",
    st_short="3", st_long="",
    slow=6, fast=6, lat=55, wo_end=1190,
    tlb=True, own_first=False, lead=4, wo_slots=4, o_pre=2, part_at=1190,
    wo_warm="",
    out_flags="sc1", cap_early=False, kv_first=4, cluster=False,
    kv_cap=0,
)
FLAG_OFF = 0x2000000
PFLAG = 0x2000
PART_OFF = 0x2800000
NEVER = 0x7ffffff0

v = lambda i, n=1: R("v", i, n)
a = lambda i, n=1: R("a", i, n)
s = lambda i, n=1: R("s", i, n)


def srd(code, base, lo, hi, size):
    code += [salu("s_mov_b32", s(base), lo), salu("s_and_b32", s(base + 1), hi, "0xffff"),
             salu("s_mov_b32", s(base + 2), size), salu("s_mov_b32", s(base + 3), "0x20000")]


def add64(code, lo, hi, off):
    code += [salu("s_add_u32", lo, lo, off), salu("s_addc_u32", hi, hi, 0)]


def stamp(code, idx, sreg=96, group="main"):
    if CFG["stamps"] and (idx == 0 or CFG.get("stgroup", "main") == group):
        code += [raw(f"s_memtime s[{sreg}:{sreg + 1}]", "smem", defs={f"s{sreg}", f"s{sreg + 1}"}),
                 raw(f"s_memrealtime s[{sreg + 2}:{sreg + 3}]", "smem", defs={f"s{sreg + 2}", f"s{sreg + 3}"}),
                 salu("s_mov_b32", s(70 + idx), s(sreg)), salu("s_mov_b32", s(82 + idx), s(sreg + 2))]


def store_stamps(code, n, ws_lo, ws_hi, region, s_w):
    if not CFG["stamps"]:
        return
    code += [salu("s_add_u32", s(60), ws_lo, hex(region)), salu("s_addc_u32", s(61), ws_hi, 0)]
    srd(code, 64, s(60), s(61), hex(256 * 4 * 128))
    code += [salu("s_lshl_b32", s(62), s(2), 9), salu("s_lshl_b32", s(63), s_w, 7),
             salu("s_add_u32", s(62), s(62), s(63)), valu("v_mov_b32", v(1), 0)]
    for i in range(n):
        code += [valu("v_mov_b32", v(2), s(70 + i)),
                 buf_store("buffer_store_dword", v(2), v(1), s(64, 4), s(62), 4 * i),
                 valu("v_mov_b32", v(3), s(82 + i)),
                 buf_store("buffer_store_dword", v(3), v(1), s(64, 4), s(62), 64 + 4 * i)]


S_X, S_WQ, S_K, S_V, S_O = 4, 8, 12, 16, 20
S_W, S_ROT, S_KX, S_KW, S_T0, S_T1, S_LX, S_LW, S_LK, S_OFF = 24, 25, 26, 27, 28, 29, 30, 31, 32, 33
S_WS = 34
S_WOP, S_OUTP = 68, 94
S_KVO = 100
QSLOT = 53248
XB = 20480
V_DX = 1
V_DW = 3
V_RX = 4
V_RW = 7
V_DK = 13
V_RK = 17
V_RV = 19
V_ST = 21
V_T = 22
V_Q, V_S, V_P, V_NM, V_KF, V_VF = 32, 112, 152, 192, 212, 228
V_ACC = 96
A_O, A_L, A_ONE = 0, 160, 180
A_XF, A_WF = 0, 80
A_SHORT, A_LONG = 104, 216
A_KF = 184
V_DUMP = 28


S_FLAG, S_DBG, S_CODE = 36, 40, 44
S_BR, S_B, S_HP, S_MYFLAG = 60, 61, 62, 63
S_TILE, S_PFLAG, S_XCC, S_WARM = 64, 65, 66, 101
V_ONE = 31


def k1_prologue_early():
    c = [salu("s_cmp_ge_u32", s(2), 256), raw("s_cbranch_scc1 L_end", "branch", uses={"scc"})]
    R_ = CFG["qrot"]
    c += [salu("s_xor_b32", s(3), s(2), CFG.get("swap", 0)),
          salu("s_and_b32", s(56), s(3), 7), salu("s_lshr_b32", s(57), s(3), 3),
          salu("s_lshr_b32", s(S_BR), s(56), 2),
          salu("s_mul_i32", s(58), s(S_BR), 40),
          salu("s_add_u32", s(46), s(0), s(58)), salu("s_addc_u32", s(47), s(1), 0),
          smem("s_load_dwordx8", s(48, 8), s(46, 2), 0),
          smem("s_load_dwordx4", s(64, 4), s(0, 2), 88),
          smem("s_load_dwordx2", s(S_WOP, 2), s(46, 2), 32), smem("s_load_dwordx2", s(S_OUTP, 2), s(0, 2), 80),
          salu("s_bfe_u32", s(S_B), s(56), "0x10001"), salu("s_lshl_b32", s(S_B), s(S_B), 2),
          salu("s_and_b32", s(58), s(57), 3), salu("s_add_u32", s(S_B), s(S_B), s(58)),
          salu("s_lshr_b32", s(59), s(57), 2),
          salu("s_and_b32", s(S_HP), s(56), 1), salu("s_lshl_b32", s(S_HP), s(S_HP), 3),
          salu("s_add_u32", s(S_HP), s(S_HP), s(59))]
    if R_ == 8:
        c += [salu("s_lshl_b32", s(58), s(58), 1)]
    c += [salu("s_add_u32", s(S_ROT), s(58), s(59))]
    L, W, T0, T1, T2 = v(V_T), v(V_T + 1), v(V_T + 2), v(V_T + 3), v(V_T + 4)
    c += [valu("v_and_b32", L, 63, v(0)), valu("v_lshrrev_b32", W, 6, v(0)),
          valu("v_readfirstlane_b32", s(S_W), W)]
    c += [valu("v_bfe_u32", T0, L, 2, 3), valu("v_lshlrev_b32", T0, 11, T0),
          valu("v_lshrrev_b32", T1, 5, L), valu("v_lshl_add_u32", T0, T1, 6, T0),
          valu("v_mul_u32_u24", T1, 81920, W), valu("v_add_u32", T0, T0, T1),
          valu("v_and_b32", T1, 3, L), valu("v_and_b32", T2, 1, W), valu("v_lshlrev_b32", T2, 1, T2),
          valu("v_xor_b32", T1, T1, T2), valu("v_lshl_add_u32", v(V_DX), T1, 4, T0),
          valu("v_xor_b32", v(V_DX + 1), 32, v(V_DX))]
    c += [valu("v_bfe_u32", T0, L, 4, 1), valu("v_bfe_u32", T1, L, 2, 2),
          valu("v_lshl_add_u32", T1, T0, 3, T1), valu("v_lshlrev_b32", T1, 13, T1),
          valu("v_lshrrev_b32", T2, 5, L), valu("v_lshl_add_u32", T1, T2, 6, T1),
          valu("v_and_b32", T2, 3, L), valu("v_lshlrev_b32", T0, 1, T0), valu("v_xor_b32", T2, T2, T0),
          valu("v_lshl_add_u32", T1, T2, 4, T1), valu("v_lshl_add_u32", v(V_DW), W, 7, T1)]
    c += [salu("s_mul_i32", s(S_LX), s(S_W), 5120),
          salu("s_lshl_b32", s(S_LW), s(S_W), 13), salu("s_add_u32", s(S_LW), s(S_LW), XB),
          salu("s_mul_i32", s(56), s(S_B), 327680), salu("s_lshl_b32", s(58), s(S_HP), 9),
          salu("s_sub_u32", s(57), 8388608, s(58))]
    stamp(c, 1, group="s")
    add64(c, s(48), s(49), s(56))
    srd(c, S_X, s(48), s(49), 327680)
    add64(c, s(54), s(55), s(58))
    srd(c, S_WQ, s(54), s(55), s(57))
    c += [salu("s_lshl_b32", s(56), s(S_B), 22), salu("s_lshl_b32", s(57), s(S_HP), 18),
          salu("s_add_u32", s(56), s(56), s(57))]
    add64(c, s(50), s(51), s(56))
    add64(c, s(52), s(53), s(56))
    if CFG["tlb"]:
        c += [smem("s_load_dword", s(48), s(50, 2), 0), smem("s_load_dword", s(49), s(52, 2), 0)]
    return c


def touch_code(lo, hi):
    if not CFG["touch"]:
        return []
    return [raw(f"s_mov_b32 s{S_T0}, ({lo} - L_code0) & 0xffffff80", "salu", defs={f"s{S_T0}"}),
            raw(f"s_mov_b32 s{S_CODE + 2}, {hi} - L_code0", "salu", defs={f"s{S_CODE + 2}"}),
            buf_load("buffer_load_dword", v(V_TCH + 1), v(V_TCH), s(S_CODE, 4), s(S_T0), 0, tag=("t", lo))]


V_TCH = 29


def k1_prologue_late():
    c = []
    L, W, T0, T1, T2, T3 = v(V_T), v(V_T + 1), v(V_T + 2), v(V_T + 3), v(V_T + 4), v(V_T + 5)
    c += [salu("s_mov_b32", s(S_WS), s(66)), salu("s_mov_b32", s(S_WS + 1), s(67))]
    srd(c, S_DBG, s(64), s(65), 256)
    c += [salu("s_add_u32", s(58), s(S_WS), hex(FLAG_OFF)), salu("s_addc_u32", s(59), s(S_WS + 1), 0)]
    srd(c, S_FLAG, s(58), s(59), hex(2 * PFLAG))
    c += [salu("s_lshl_b32", s(56), s(S_BR), 3), salu("s_add_u32", s(56), s(56), s(S_B)),
          salu("s_lshl_b32", s(57), s(56), 4), salu("s_add_u32", s(57), s(57), s(S_HP)),
          salu("s_lshl_b32", s(57), s(57), 2), salu("s_add_u32", s(57), s(57), s(S_W)),
          salu("s_lshl_b32", s(S_MYFLAG), s(57), 2),
          salu("s_lshl_b32", s(56), s(56), 3), salu("s_and_b32", s(57), s(S_HP), 7),
          salu("s_add_u32", s(S_TILE), s(56), s(57)),
          salu("s_lshl_b32", s(57), s(S_TILE), 2), salu("s_add_u32", s(57), s(57), s(S_W)),
          salu("s_lshl_b32", s(57), s(57), 2), salu("s_add_u32", s(S_PFLAG), s(57), hex(PFLAG)),
          salu("s_bitcmp1_b32", s(S_HP), 3), salu("s_cselect_b32", s(56), hex(4 * PFLAG), s(S_PFLAG))]
    c += [valu("v_mov_b32", v(V_ONE), hex(NEVER)), valu("v_cmp_ne_u32", "vcc", 0, L),
          valu("v_cndmask_b32", v(V_ONE), 0, v(V_ONE)), valu("v_mov_b32", T0, 0),
          raw(f"s_getreg_b32 s{S_XCC}, hwreg(HW_REG_XCC_ID, 0, 4)", "salu", defs={f"s{S_XCC}"}),
          valu("v_mov_b32", T1, s(S_XCC)),
          buf_store("buffer_store_dword", T1, v(V_ONE), s(S_FLAG, 4), s(S_MYFLAG), 0, "sc1", tag=("clr", 0)),
          buf_store("buffer_store_dword", T0, v(V_ONE), s(S_FLAG, 4), s(56), 0, "sc1", tag=("clr", 0))]
    if CFG["touch"]:
        c += [raw("s_getpc_b64 s[58:59]", "salu", defs={"s58", "s59"}), label("L_pc"),
              raw("s_sub_u32 s58, s58, L_pc - L_code0", "salu", defs={"s58", "scc"}, uses={"s58"}),
              salu("s_subb_u32", s(59), s(59), 0)]
        srd(c, S_CODE, s(58), s(59), 0)
        c += [salu("s_lshr_b32", s(56), s(2), 3), salu("s_lshl_b32", s(56), s(56), 7),
              valu("v_lshlrev_b32", T0, 12, v(0)), valu("v_add_u32", T0, s(56), T0),
              valu("v_mov_b32", v(V_TCH), hex(NEVER)), valu("v_cmp_gt_u32", "vcc", 32, v(0)),
              valu("v_cndmask_b32", v(V_TCH), v(V_TCH), T0)]
        c += touch_code("L_code0", "L_att")
    c += [valu("v_bfe_u32", T0, L, 3, 1), valu("v_and_b32", T1, 7, L), valu("v_lshlrev_b32", T1, 6, T1),
          valu("v_lshl_add_u32", T1, T0, 10, T1), valu("v_lshrrev_b32", T2, 4, L),
          valu("v_lshlrev_b32", T0, 1, T0), valu("v_xor_b32", T2, T2, T0), valu("v_lshl_add_u32", T1, T2, 4, T1),
          valu("v_and_b32", T0, 1, W), valu("v_mul_u32_u24", T0, 10240, T0), valu("v_add_u32", v(V_RX), T0, T1),
          valu("v_add_u32", v(V_RX + 1), QSLOT, v(V_RX)), valu("v_add_u32", v(V_RX + 2), 2 * QSLOT, v(V_RX))]
    c += [valu("v_lshrrev_b32", T0, 5, L), valu("v_lshlrev_b32", T0, 11, T0),
          valu("v_bfe_u32", T1, L, 2, 2), valu("v_lshl_add_u32", T0, T1, 6, T0),
          valu("v_bfe_u32", T1, L, 4, 1), valu("v_mul_u32_u24", T1, 288, T1), valu("v_add_u32", T0, T0, T1),
          valu("v_and_b32", T1, 3, L), valu("v_lshl_add_u32", T0, T1, 3, T0),
          valu("v_lshrrev_b32", T1, 1, W), valu("v_lshl_add_u32", T0, T1, 14, T0),
          valu("v_add_u32", v(V_RW), XB, T0), valu("v_xor_b32", v(V_RW + 1), 32, v(V_RW))]
    for sl in (1, 2):
        c += [valu("v_add_u32", v(V_RW + 2 * sl), sl * QSLOT, v(V_RW)),
              valu("v_add_u32", v(V_RW + 2 * sl + 1), sl * QSLOT, v(V_RW + 1))]
    c += [valu("v_bfe_u32", T0, L, 2, 2), valu("v_lshlrev_b32", T0, 8, T0),
          valu("v_lshrrev_b32", T1, 4, L), valu("v_lshl_add_u32", T0, T1, 6, T0),
          valu("v_and_b32", T1, 3, L), valu("v_lshl_add_u32", T0, T1, 4, T0),
          valu("v_lshrrev_b32", T1, 1, W), valu("v_lshl_add_u32", T0, T1, 17, T0),
          valu("v_and_b32", T1, 1, W), valu("v_lshl_add_u32", v(V_DK), T1, 12, T0)]
    for rq in (1, 2, 3):
        c += [valu("v_xor_b32", v(V_DK + rq), 16 * rq, v(V_DK))]
    c += [valu("v_bfe_u32", T0, L, 2, 2), valu("v_and_b32", T1, 3, L), valu("v_lshlrev_b32", T1, 6, T1),
          valu("v_lshl_add_u32", T1, T0, 10, T1), valu("v_lshrrev_b32", T2, 5, L), valu("v_xor_b32", T2, T2, T0),
          valu("v_lshl_add_u32", T1, T2, 4, T1), valu("v_bfe_u32", T2, L, 4, 1),
          valu("v_lshl_add_u32", T1, T2, 3, T1), valu("v_lshrrev_b32", T3, 1, W),
          valu("v_lshl_add_u32", T1, T3, 13, T1), valu("v_add_u32", v(V_RK), 2 * 32768, T1),
          valu("v_xor_b32", v(V_RK + 1), 32, v(V_RK))]
    c += [valu("v_lshrrev_b32", T0, 4, L), valu("v_lshlrev_b32", T0, 10, T0),
          valu("v_bfe_u32", T1, L, 2, 2), valu("v_lshl_add_u32", T0, T1, 6, T0),
          valu("v_bfe_u32", T1, L, 4, 1), valu("v_lshl_add_u32", T0, T1, 5, T0),
          valu("v_and_b32", T1, 3, L), valu("v_lshl_add_u32", T0, T1, 3, T0),
          valu("v_lshl_add_u32", T0, T3, 13, T0), valu("v_add_u32", v(V_RV), 2 * 32768 + 16384, T0),
          valu("v_xor_b32", v(V_RV + 1), 32, v(V_RV))]
    c += [valu("v_mul_u32_u24", T0, 40960, T3), valu("v_and_b32", T1, 1, W), valu("v_mul_u32_u24", T1, 5120, T1),
          valu("v_lshl_add_u32", T0, L, 4, T0), valu("v_add_u32", v(V_ST), T0, T1)]
    c += [valu("v_lshlrev_b32", T0, 12, W), valu("v_lshl_add_u32", v(V_DUMP), L, 4, T0)]
    c += [valu("v_mov_b32", T0, "0x3f803f80")]
    for i in range(4):
        c += [valu("v_accvgpr_write_b32", a(A_ONE + i), T0)]
    c += p2_selectors()
    srd(c, S_K, s(50), s(51), 262144)
    srd(c, S_V, s(52), s(53), 262144)
    c += [salu("s_lshl_b32", s(56), s(S_BR), 3), salu("s_add_u32", s(56), s(56), s(S_B)),
          salu("s_mul_i32", s(56), s(56), 1310720),
          salu("s_add_u32", s(58), s(S_WS), s(56)), salu("s_addc_u32", s(59), s(S_WS + 1), 0)]
    srd(c, S_O, s(58), s(59), 1310720)
    c += [salu("s_mul_i32", s(S_OFF), s(S_HP), 81920), salu("s_lshl_b32", s(S_LK), s(S_W), 12)]
    if CFG["wo_warm"]:
        srd(c, 52, s(S_WOP), s(S_WOP + 1), 8388608)
        c += [salu("s_lshl_b32", s(56), s(S_B), 4), salu("s_add_u32", s(56), s(56), s(S_HP)),
              salu("s_lshl_b32", s(S_WARM), s(56), 16),
              valu("v_mul_u32_u24", T1, warm_lanes(), W), valu("v_add_u32", T1, T1, L),
              valu("v_lshlrev_b32", T1, 7, T1), valu("v_mov_b32", v(V_T + 2), hex(NEVER)),
              valu("v_cmp_gt_u32", "vcc", warm_lanes(), L), valu("v_cndmask_b32", v(V_T + 2), v(V_T + 2), T1)]
    if CFG["kv_cap"]:
        c += [raw("s_getreg_b32 s56, hwreg(HW_REG_XCC_ID)", "salu", defs={"s56"}),
              salu("s_bitcmp1_b32", s(56), 0), salu("s_cselect_b64", "vcc", -1, 0)]
    return c


def warm_lanes():
    return -(-128 // len(ints(CFG["wo_warm"])))


def rot_index(dst, rot, n, R_):
    if R_ == 1:
        return [salu("s_mov_b32", dst, n)]
    c = [salu("s_add_u32", dst, rot, n & (R_ - 1)), salu("s_and_b32", dst, dst, R_ - 1)]
    if n & ~(R_ - 1):
        c += [salu("s_or_b32", dst, dst, n & ~(R_ - 1))]
    return c


def q_stage_ops(j):
    sl = (j % 3) * QSLOT
    setup = rot_index(s(S_T0), s(S_ROT), j, CFG["qrot"])
    setup += [salu("s_lshl_b32", s(S_KX), s(S_T0), 7), salu("s_lshl_b32", s(S_KW), s(S_T0), 19)]
    ops = []
    for n in range(8):
        st, gu, hf = n >> 2, (n >> 1) & 1, n & 1
        ops.append((salu("s_add_u32", "m0", s(S_LW), sl + n * 1024),
                    salu("s_add_u32", s(S_T1), s(S_KW), (32 * st + 16 * gu + 4 * hf) * 8192),
                    buf_dma(v(V_DW), s(S_WQ, 4), s(S_T1), 0, CFG["xw_flags"], tag=("q", j))))
    xo = []
    for t in range(5):
        xo.append((salu("s_add_u32", "m0", s(S_LX), sl + t * 1024),
                   salu("s_add_u32", s(S_T1), s(S_KX), t * 16384),
                   buf_dma(v(V_DX + (t & 1)), s(S_X, 4), s(S_T1), 0, CFG["xw_flags"], tag=("q", j))))
    order = [xo[0], ops[0], ops[1], xo[1], ops[2], ops[3], xo[2], ops[4], xo[3], ops[5], ops[6], xo[4], ops[7]]
    if j == 0:
        order = [ops[0], xo[0], ops[1], xo[1], ops[2], xo[2], ops[3], xo[3], xo[4]] + ops[4:]
        for _, _, d in order[:9]:
            d.tag = ("q", -1)
    return setup, order


OUTLINE = []


def even_cap():
    if CFG.get("cap_all"):
        return [wait(vm=CFG["kv_cap"])]
    k = len(OUTLINE)
    OUTLINE.extend([label(f"L_cap{k}"), raw(f"s_waitcnt vmcnt({CFG['kv_cap']})"), raw(f"s_branch L_capback{k}")])
    return [raw(f"s_cbranch_vccz L_cap{k}", "xbranch", uses={"vcc"}), Ins(f"L_capback{k}:", "xlabel")]


def ints(x):
    return [int(y) for y in str(x).split(",") if y != ""]


class KVStream:
    def __init__(self):
        short, long_ = ints(CFG["st_short"]), ints(CFG["st_long"])
        nst = sum(int(x.split(":")[1]) for x in CFG["stash"].split(",") if x)
        assert nst % 4 == 0
        cand = [(c, isv) for c in short + long_ for isv in range(2)][:nst // 4]
        self.reg = {}
        ns = nl = 0
        for c, isv in cand:
            if c in short:
                self.reg[(c, isv)] = A_SHORT + 16 * ns
                ns += 1
            else:
                self.reg[(c, isv)] = A_LONG + 16 * nl
                nl += 1
        assert A_SHORT + 16 * ns <= A_ONE and A_LONG + 16 * nl <= 248
        self.parked = [(c, isv, rq) for c, isv in cand for rq in range(4)]
        self.dma = [(c, isv, rq) for c in range(16) for isv in range(2) if (c, isv) not in self.reg
                    for rq in range(4)]

    def left(self):
        return len(self.dma)

    def peek(self):
        return self.dma[0][:2]

    @staticmethod
    def voff(isv, rq):
        return v(V_DK + (rq if not isv else 2 * (rq & 1)))

    def next(self):
        c, isv, rq = self.dma.pop(0)
        sc = []
        if rq == 0:
            sc = [salu("s_add_u32", "m0", s(S_LK), ((c + 2) % 5) * 32768 + isv * 16384),
                  salu("s_mov_b32", s(S_KVO), c * 8192)]
        return sc, buf_dma(self.voff(isv, rq), s(S_V if isv else S_K, 4), s(S_KVO), rq * 1024, CFG["kv_flags"],
                           tag=("v" if isv else "k", c))

    def next_parked(self):
        c, isv, rq = self.parked.pop(0)
        sc = [salu("s_mov_b32", s(S_KVO), c * 8192)] if rq == 0 else []
        return sc, buf_load("buffer_load_dwordx4", a(self.reg[(c, isv)] + 4 * rq, 4), self.voff(isv, rq),
                            s(S_V if isv else S_K, 4), s(S_KVO), rq * 1024, CFG["kv_flags"], tag=("park", c))

    def dump(self, c, isv):
        t = v(V_T + 3)
        return [valu("v_add_u32", t, ((c + 2) % 5) * 32768 + isv * 16384, v(V_DUMP))] + \
               [ds_write("ds_write_b128", t, a(self.reg[(c, isv)] + 4 * rq, 4), rq * 1024) for rq in range(4)]

    def place(self, G, positions, free_from, cap=True):
        last = -10
        for g in positions:
            g = max(int(g), free_from(*self.peek()), last + (3 if self.dma[0][2] == 0 else 1))
            sc, d = self.next()
            for i, o in enumerate(sc):
                G.put(g - 2 + i, o)
            last = G.place(d, g, g + 2)
            if CFG["kv_cap"] and cap:
                G.put(last, *even_cap())
        return last


KV = None


def acc_q(T, qb):
    return v(V_ACC + (qb * 8 + T) * 4, 4)


def k1_qproj():
    pre = []
    setup, order = q_stage_ops(0)
    pre += setup
    for m0, so, dma in order:
        pre += [m0, so, dma]
    stamp(pre, 2, group="s")
    pre += k1_prologue_late()
    stamp(pre, 3, group="s")
    wf = lambda j, st, T: A_WF + 4 * ((16 * j + (8 * st + T if j == 0 else 2 * T + st)) % 6)
    xf = lambda j, st, qb: A_XF + 20 * (2 * (j & 1) + st) + 4 * qb
    mf = []
    for j in range(16):
        seq = [(st, T, qq) for st in range(2) for T in range(8) for qq in range(5)] if j == 0 else \
              [((i + qq + T) & 1, T, qq) for T in range(8) for qq in range(5) for i in range(2)]
        for st, T, qq in seq:
            qb = qq if T % 2 == 0 else 4 - qq
            d = acc_q(T, qb)
            mf.append(mfma(d, a(wf(j, st, T), 4), a(xf(j, st, qb), 4), 0 if (j == 0 and st == 0) else d))
    G = Gaps(mf)

    def a_reads(j, st, T):
        base = v(V_RW + 2 * (j % 3) + (T & 1))
        return [ds_read("ds_read_b64_tr_b16", a(wf(j, st, T) + 2 * hf, 2), base,
                        (T >> 2) * 8192 + st * 4096 + hf * 1024 + ((T >> 1) & 1) * 512) for hf in range(2)]

    def b_read(j, st, qb):
        return ds_read("ds_read_b128", a(xf(j, st, qb), 4), v(V_RX + j % 3), qb * 2048 + st * 512)

    stamp(pre, 1)
    setup, order1 = q_stage_ops(1)
    pre += setup
    for m0, so, dma in order1[:7]:
        pre += [m0, so, dma]
    pre += [waitvm(lambda t: t == ("q", -1))]
    stamp(pre, 4, group="s")
    pre += [barrier()]
    stamp(pre, 5, group="s")
    stamp(pre, 2)
    for i, gg in enumerate((0, 30, 61, 63, 80 + 61, 80 + 63)):
        st = []
        stamp(st, 6 + i, group="s")
        G.put_seq(gg, *st)
    G.put(14, waitvm(lambda t: t == ("q", 0)), barrier())
    for i, (m0, so, dma) in enumerate(order1[11:]):
        G.put(2 * i, m0, so)
        G.put(2 * i + 1, dma)

    BAR = 58
    pre += [b_read(0, 0, 0)] + a_reads(0, 0, 0) + [b_read(0, 0, qb) for qb in range(1, 5)]
    for T in (1, 2, 3, 4):
        pre += a_reads(0, 0, T)
    for m0, so, dma in order1[7:11]:
        pre += [m0, so, dma]
    for f in range(5, 16):
        G.put(5 * (f - 5), *a_reads(0, f >> 3, f & 7))
    for qb in range(5):
        G.place(b_read(0, 1, qb), 12 + 5 * qb, 14 + 5 * qb)
    for j in range(1, 16):
        for T in range(8):
            for st in range(2):
                G.put(80 * j + 10 * (T - 2) + st, *a_reads(j, st ^ (T & 1), T))
        g = 80 * (j - 1) + BAR + 1
        for qb in range(5):
            for i in range(2):
                g = G.place(b_read(j, (i + qb) & 1, qb), g, g + 4) + (1 if i else 0)
        assert g < 80 * j - 2
    for j in range(16):
        g = 80 * j + BAR
        if j < 15:
            G.put(g, waitlds(), waitvm(lambda t, j=j: t in (("q", j + 1), ("clr", 0))), barrier())
        else:
            G.put(g, waitlds(), waitvm(lambda t: t == ("k", 0)), barrier())
        if j in (2, 12):
            st = []
            stamp(st, 1 + (j == 12), group="z")
            G.put(g, *st)
        QS = [0, 1, 2, 3, 5, 7, 8, 9, 10, 12, 15]
        if j in QS:
            st = []
            stamp(st, 1 + QS.index(j), group="q")
            G.put(g, *st)
    global KV
    KV = KVStream()
    park = dict(map(int, x.split(":")) for x in CFG["stash"].split(",") if x)
    g, last_miss, prev = 8, -1000, 3
    for j in range(2, 16):
        setup, order = q_stage_ops(j)
        miss = j % CFG["qrot"] == 0
        g = max(g, 80 * (j - 3) + BAR + 3 + len(setup))
        seq = [(([m0, so]), dma, miss) for m0, so, dma in order]
        seq[0] = (setup + seq[0][0], seq[0][1], miss)
        seq += [KV.next_parked() + (True,) for _ in range(park.get(j, 0))]
        if j in ints(CFG["wo_warm"]):
            i = ints(CFG["wo_warm"]).index(j)
            seq += [([salu("s_add_u32", s(S_KVO), s(S_WARM), i * warm_lanes() * 512)],
                     buf_load("buffer_load_dword", v(V_TCH + 1), v(V_T + 2), s(52, 4), s(S_KVO), 0, tag=("t", j)), True)]
        for i, (sc, op, is_miss) in enumerate(seq):
            prev = G.with_scalars(sc, op, g, max(prev, 80 * (j - 3) + BAR - 4))
            if i == 12:
                margin = 80 * (j - 1) + BAR - g
                print(f"; stage {j}: last load at gap {g}, {margin} gaps before it is needed", file=sys.stderr)
            if is_miss:
                last_miss = g
            g += CFG["slow"] if g - last_miss < CFG["lat"] else CFG["fast"]
    q_loads_end = max(g, prev + 4)
    G.put_seq(80 * 13 + BAR - 2, *touch_code("L_att", "L_out"))
    assert not KV.parked
    n, g0 = CFG["kv_q"], max(80 * 13 + BAR + 4, q_loads_end)
    first = min(n, CFG["kv_first"])
    pos = [g0 + 4 * i for i in range(first)]
    pos += [pos[-1] + (1276 - pos[-1]) * (i + 1) / (n - first) for i in range(n - first)]
    KV.place(G, pos, lambda c, isv: 80 * (13 if c == 0 else 14 if c < 3 else 15) + BAR + 3, CFG["cap_early"])
    return pre + G.flatten()


def s_t(kt, qb):
    return V_S + (kt * 5 + qb) * 4


def k_reads(c, f):
    kt, u = divmod(f, 4)
    return [ds_read("ds_read_b64", a(A_KF + 4 * f + 2 * jj, 2), v(V_RK + jj), kt * 4096 + u * 256) for jj in range(2)]


def v_reads(c, T):
    r = V_VF + 4 * (T % 4)
    return [ds_read("ds_read_b64_tr_b16", v(r + 2 * kt, 2), v(V_RV + (T & 1)), kt * 4096 + (T >> 1) * 256)
            for kt in range(2)]


def ring_step(reg, c_next):
    if (c_next + 2) % 5 == 0:
        return valu("v_subrev_u32", v(reg), 4 * 32768, v(reg))
    return valu("v_add_u32", v(reg), 32768, v(reg))


def x_mfmas(c):
    out = []
    for kt in range(2):
        for qb in range(5):
            d = v(s_t(kt, qb), 4)
            for i in range(4):
                u = i if qb % 2 == 0 else 3 - i
                cc = d if i else (0 if c == 0 else v(V_NM + 4 * qb, 4))
                out.append(mfma(d, a(A_KF + 4 * (4 * kt + u), 4), v(V_Q + (qb * 4 + u) * 4, 4), cc))
    return out


def p_reg(c, qb):
    return V_P + 20 * (c & 1) + 4 * qb


def y_mfmas(c):
    out = []
    for qb in range(5):
        d = a(A_L + 4 * qb, 4)
        out.append(mfma(d, a(A_ONE, 4), v(p_reg(c, qb), 4), d if c else 0))
    for T in range(8):
        for qq in range(5):
            qb = qq if T % 2 == 0 else 4 - qq
            d = a(A_O + (T * 5 + qb) * 4, 4)
            out.append(mfma(d, v(V_VF + 4 * (T % 4), 4), v(p_reg(c, qb), 4), d if c else 0))
    return out


def softmax_ops(c, kt):
    out = []
    for qb in range(5):
        r = s_t(kt, qb)
        ex = [valu("v_exp_f32", v(r + i), v(r + i)) for i in range(4)]
        cv = [valu("v_cvt_pk_bf16_f32", v(p_reg(c, qb) + 2 * kt + h), v(r + 2 * h), v(r + 2 * h + 1)) for h in range(2)]
        out.append((ex, cv))
    return out


def k1_convert_q():
    c = [salu("s_mov_b32", s(56), hex(SCALE)), salu("s_mov_b32", s(57), hex(SCALE))]
    for qb in range(5):
        for u in range(4):
            for h in range(2):
                r = V_ACC + (qb * 8 + 2 * u + h) * 4
                c += [valu("v_pk_mul_f32", v(r + 2 * i, 2), v(r + 2 * i, 2), s(56, 2)) for i in range(2)]
            for h in range(2):
                r = V_ACC + (qb * 8 + 2 * u + h) * 4
                c += [valu("v_cvt_pk_bf16_f32", v(V_Q + (qb * 4 + u) * 4 + 2 * h + i), v(r + 2 * i), v(r + 2 * i + 1))
                      for i in range(2)]
    return c


RL = 244
L_LIMIT = 0x4b800000


def row_max_finish():
    c = []
    for op in ("v_permlane32_swap_b32", "v_permlane16_swap_b32"):
        c += [valu("v_mov_b32", v(V_NM + 4 * qb + 1), v(V_NM + 4 * qb)) for qb in range(5)]
        c += [perm(op, v(V_NM + 4 * qb), v(V_NM + 4 * qb + 1)) for qb in range(5)]
        c += [valu("v_max_f32", v(V_NM + 4 * qb), v(V_NM + 4 * qb), v(V_NM + 4 * qb + 1)) for qb in range(5)]
    for qb in range(5):
        m = V_NM + 4 * qb
        c += [valu("v_sub_f32", v(m + i), 0, v(m)) for i in (3, 2, 1, 0)]
    return c


def read_l():
    return [valu("v_accvgpr_read_b32", v(RL + 2 * qb), a(A_L + 4 * qb)) for qb in range(5)]


def exact_softmax_fallback():
    DK, RK, RV, FR = V_P + 20, V_P + 24, V_P + 26, V_KF
    S_C, S_PRIV = S_KVO, S_T0
    c = [label("L_exact"), raw("s_waitcnt vmcnt(0) lgkmcnt(0)"), salu("s_lshl_b32", s(S_PRIV), s(S_W), 14)]
    c += [valu("v_and_b32", v(DK + i), "0xffffefff", v(V_DK + i)) for i in range(4)]
    for dst, src, off in ((RK, V_RK, 0), (RV, V_RV, 8192)):
        for i in range(2):
            c += [valu("v_and_b32", v(dst + i), "0xfff", v(src + i)), valu("v_add_u32", v(dst + i), off, v(dst + i)),
                  valu("v_add_u32", v(dst + i), s(S_PRIV), v(dst + i))]

    def load(isv):
        out = []
        for kt in range(2):
            out += [salu("s_add_u32", "m0", s(S_PRIV), isv * 8192 + kt * 4096),
                    salu("s_add_u32", s(S_T1), s(S_C), kt * 4096)]
            out += [buf_dma(v(DK + (rq if not isv else 2 * (rq & 1))), s(S_V if isv else S_K, 4), s(S_T1), rq * 1024)
                    for rq in range(4)]
        return out

    def scores(cinit):
        out = []
        for f in range(8):
            kt, u = divmod(f, 4)
            out += [ds_read("ds_read_b64", v(FR + 4 * f + 2 * jj, 2), v(RK + jj), kt * 4096 + u * 256)
                    for jj in range(2)]
            if f % 2:
                out += [waitlds()]
        for f in range(8):
            kt, u = divmod(f, 4)
            for qb in range(5):
                d = v(s_t(kt, qb), 4)
                out += [mfma(d, v(FR + 4 * f, 4), v(V_Q + (qb * 4 + u) * 4, 4), d if u else cinit(qb))]
        return out

    def loop(name, body):
        return [salu("s_mov_b32", s(S_C), 0), label(name)] + body + \
               [nop(8), salu("s_add_u32", s(S_C), s(S_C), 8192), salu("s_cmp_lt_u32", s(S_C), 131072),
                raw(f"s_cbranch_scc1 {name}", "branch", uses={"scc"})]

    c += [valu("v_mov_b32", v(V_NM + 4 * qb), "0xff800000") for qb in range(5)]
    body = load(0) + [wait(vm=0)] + scores(lambda qb: 0)
    for qb in range(5):
        m = v(V_NM + 4 * qb)
        for kt in range(2):
            r = s_t(kt, qb)
            body += [valu("v_max3_f32", m, m, v(r), v(r + 1)), valu("v_max3_f32", m, m, v(r + 2), v(r + 3))]
    c += loop("L_exact_max", body) + row_max_finish()
    c += [valu("v_accvgpr_write_b32", a(i), 0) for i in range(A_ONE)]
    body = load(0) + load(1) + [wait(vm=0)] + scores(lambda qb: v(V_NM + 4 * qb, 4))
    for kt in range(2):
        for ex, cv in softmax_ops(0, kt):
            body += ex + cv
    for T in range(8):
        body += [ds_read("ds_read_b64_tr_b16", v(FR + 4 * T + 2 * kt, 2), v(RV + (T & 1)), kt * 4096 + (T >> 1) * 256)
                 for kt in range(2)]
        if T % 2:
            body += [waitlds()]
    for qb in range(5):
        d = a(A_L + 4 * qb, 4)
        body += [mfma(d, a(A_ONE, 4), v(p_reg(0, qb), 4), d)]
    for T in range(8):
        for qb in range(5):
            d = a(A_O + (T * 5 + qb) * 4, 4)
            body += [mfma(d, v(FR + 4 * T, 4), v(p_reg(0, qb), 4), d)]
    c += loop("L_exact_pv", body) + read_l() + [raw("s_branch L_checked", "branch")]
    return c


def k1_attention():
    c = []
    conv = k1_convert_q()
    head = []
    for f in range(4):
        head += k_reads(0, f)

    def weave(code, n):
        step = len(code) // (n + 1) if n else 0
        for i in range(n):
            if KV.peek()[0] >= 5:
                break
            sc, d = KV.next()
            if CFG["kv_cap"] and CFG["cap_early"]:
                sc = sc + even_cap()
            at = (i + 1) * step + 3 * i
            code[at:at] = sc + [d]

    weave(conv, CFG["kv_c"])
    dumps = [x for (c_, isv) in KV.reg if c_ < 5 for x in KV.dump(c_, isv)]
    for i, x in enumerate(dumps):
        conv.insert(4 + i * (len(conv) - 8) // max(len(dumps), 1), x)
    cut = len(conv) - 30
    c += [label("L_att")] + conv[:cut] + head + conv[cut:]
    stamp(c, 3)
    G = Gaps(x_mfmas(0))
    for f in range(4, 8):
        G.put(3 * (f - 4), *k_reads(0, f))
    G.put(26, ring_step(V_RK, 1), ring_step(V_RK + 1, 1))
    nx = CFG["kv_x"] // 2
    nx = min(nx, sum(1 for x in KV.dma if x[0] < 5))
    KV.place(G, [7 + 30 * i / max(nx, 1) for i in range(nx)], lambda c, isv: 0, CFG["cap_early"])
    c += G.flatten()
    T = V_T
    for qb in range(5):
        r0, r1, m = s_t(0, qb), s_t(1, qb), V_NM + 4 * qb
        c += [valu("v_max3_f32", v(m), v(r0), v(r0 + 1), v(r0 + 2)),
              valu("v_max3_f32", v(m + 1), v(r0 + 3), v(r1), v(r1 + 1)),
              valu("v_max3_f32", v(m), v(m), v(r1 + 2), v(r1 + 3)),
              valu("v_max_f32", v(m), v(m), v(m + 1))]
    c += row_max_finish()
    c += [waitvm(lambda t: t in (("k", 1), ("v", 0))), waitlds(), barrier()]
    for f in range(4):
        c += k_reads(1, f)
    sm = []
    for kt in range(2):
        for qb in range(5):
            r = s_t(kt, qb)
            sm += [valu("v_add_f32", v(r + i), v(V_NM + 4 * qb), v(r + i)) for i in range(4)]
    for kt in range(2):
        for ex, cv in softmax_ops(0, kt):
            sm += ex
        for ex, cv in softmax_ops(0, kt):
            sm += cv
    weave(sm, CFG["kv_x"] - nx)
    assert KV.peek() >= (0, 0)
    c += sm
    stamp(c, 4)
    stamp(c, 1, group="a")
    mf = []
    start = []
    for p in range(16):
        start.append(len(mf))
        if p < 15:
            mf += x_mfmas(p + 1)
        mf += y_mfmas(p)
    G = Gaps(mf)
    ypos = [start[p] + (40 if p < 15 else 0) for p in range(16)]
    for p in range(16):
        g0, y0 = start[p], ypos[p]
        if p < 15:
            for f in range(4, 8):
                G.put(g0 + 4 * (f - 4), *k_reads(p + 1, f))
        for T in range(8):
            g = y0 - 10 + 5 * T
            if p == 15 and T < 2:
                continue
            G.put(g, *v_reads(p, T))
        if p < 15:
            bar = y0 + 29
            need = [("k", p + 2), ("v", p + 1)]
            G.put(bar, waitlds(), waitvm(lambda t, need=need: t in need), barrier())
            if p in (2, 12):
                st = []
                stamp(st, 3 + (p == 12), group="z")
                G.put(bar, *st)
            AS = [0, 1, 2, 4, 6, 8, 10, 12, 13, 14]
            if p in AS:
                st = []
                stamp(st, 2 + AS.index(p), group="a")
                G.put(bar, *st)
            if p < 14:
                G.put(g0 + 22, ring_step(V_RK, p + 2))
                G.put(g0 + 23, ring_step(V_RK + 1, p + 2))
                for f in range(4):
                    G.put(bar + 1 + 3 * f, *k_reads(p + 2, f))
            G.put(y0 + 27, ring_step(V_RV, p + 1))
            G.put(y0 + 28, ring_step(V_RV + 1, p + 1))
            if p == 14:
                G.put(bar + 6, *v_reads(15, 0))
                G.put(bar + 11, *v_reads(15, 1))
    n = KV.left()

    def free_from(c, isv):
        p = c - 5 if isv else c - 6
        return ypos[p] + 29 + 3 if p >= 0 else 2

    pos = [3 + (CFG["kv_end"] - 3) * i / (n - 1) for i in range(n)]
    if CFG["cluster"]:
        lead = [i - x[2] if i >= x[2] else 0 for i, x in enumerate(KV.dma)]
        pos = [pos[k] for k in lead]
    kv_last = KV.place(G, pos, free_from)
    sc, vc = p2_setup()
    g = start[2]
    for o in sc:
        while G.s[g]:
            g += 1
        G.put(g, *(o if isinstance(o, list) else [o]))
    g = start[2]
    for o in vc:
        g = G.place(o, g, g + 20) + 1

    g = kv_last + 6
    step = max(4, min(8, (len(mf) - 6 - g) // 16))
    for m, p in enumerate((10, 11, 11, 12)):
        for sc, op in p2_wo(m):
            g = max(g, ypos[p] + 29 + 2 + len(sc))
            for q, o in enumerate(sc):
                G.put(g - 3 + (3 * q) // len(sc), o)
            g = G.place(op, g, g + 2) + step
    for c_, isv in KV.reg:
        if c_ >= 5:
            g = free_from(c_, isv) + (30 if isv else 0)
            for x in KV.dump(c_, isv):
                g = G.place(x, g, g + 6) + 1
    G.put(ypos[1] + 1, valu("v_mov_b32", v(V_T + 2), 1))
    G.put(ypos[1] + 2, salu("s_lshl_b32", s(S_T0), s(S_W), 12))
    G.put(ypos[1] + 3, Ins(f"buffer_atomic_add {v(V_T + 2)}, {v(V_ONE)}, {s(S_DBG, 4)}, {s(S_T0)} offen sc1", "vm_st",
                           (), regs_of(v(V_T + 2)) | regs_of(v(V_ONE)) | regs_of(s(S_DBG, 4)) | {f"s{S_T0}"},
                           tag=("cnt", 0)))
    zero, lane4, pf, pc = v(V2_T + 1), v(V2_T + 5), v(V2_T + 2), v(V2_T + 4)
    cnt_load = buf_load("buffer_load_dword", pc, zero, s(S_DBG, 4), 0, 0, "sc1")
    id_load = buf_load("buffer_load_dword", pf, lane4, s(S_FLAG, 4), s(S2_FL), 0, "sc1")
    g = start[9] + 1
    for o in (valu("v_mov_b32", zero, 0), valu("v_and_b32", lane4, 31, v(0)), valu("v_lshlrev_b32", lane4, 2, lane4),
              cnt_load):
        g = G.place(o, g, g + 10) + 1
    G.put_seq(start[11] + 2, *check("L_cnt", cnt_load, lambda: [valu("v_readfirstlane_b32", s(S_POLL), pc),
                                                                 salu("s_cmp_ge_u32", s(S_POLL), 256)]), id_load)
    g = G.place(valu("v_and_b32", pf, 15, pf), start[13] + 2, start[13] + 12)
    G.place(valu("v_cmp_eq_u32", s(54, 2), s(S_XCC), pf), g + 1, g + 10)
    ops = []
    for p in range(15):
        g0, nxt = start[p], start[p + 1]
        for kt in range(2):
            for qb, (ex, cv) in enumerate(softmax_ops(p + 1, kt)):
                done = g0 + 20 * kt + 4 * qb + 3
                hi = ypos[p + 1] + qb - 2
                if p < 14:
                    hi = min(hi, nxt + 20 * kt + 4 * qb - 1)
                base = len(ops)
                for i, e in enumerate(ex):
                    ops.append(dict(ins=e, lo=done + 4, hi=hi - 1 - (3 - i)))
                for h, x in enumerate(cv):
                    ops.append(dict(ins=x, lo=done + 4, hi=hi, deps=[base + 2 * h, base + 2 * h + 1]))
    G.put_seq(ypos[9] + 31, *touch_code("L_out", "L_end"))
    over = G.schedule(ops)
    print(f"; attention: {over} softmax ops placed in full gaps", file=sys.stderr)
    c += G.flatten()
    stamp(c, 5)
    c += [label("L_out"), barrier()]
    if CFG["tlb"]:
        c += [smem("s_load_dword", s(59), s(S_OUTP, 2), 0)]
    c += read_l() + [valu("v_max3_f32", v(RL + 1), v(RL), v(RL + 2), v(RL + 4)),
                     valu("v_max3_f32", v(RL + 1), v(RL + 1), v(RL + 6), v(RL + 8)),
                     valu("v_cmp_lt_f32", "vcc", hex(0 if CFG.get("force_exact") else 0x7f800000 if CFG.get("abl") else L_LIMIT), v(RL + 1)),
                     raw("s_cbranch_vccnz L_exact", "branch", uses={"vcc"}), label("L_checked")]
    OUTLINE.extend(exact_softmax_fallback())
    c += [salu("s_cmp_eq_u64", s(54, 2), -1), raw("s_cbranch_scc0 L_remote", "branch", uses={"scc"}),
          Ins("; local", "mark", tag="begin")]
    for qb in range(5):
        c += [valu("v_rcp_f32", v(RL + 2 * qb), v(RL + 2 * qb))]
    B0 = V_S
    n = 0
    for u in range(4):
        c += [salu("s_add_u32", s(S_T1), s(S_OFF), u * 10240)]
        for qb in range(5):
            tb = B0 + 12 * (n % 8)
            n += 1
            for h in range(2):
                c += [valu("v_accvgpr_read_b32", v(tb + 4 * h + i), a(A_O + ((2 * u + h) * 5 + qb) * 4 + i))
                      for i in range(4)]
            c += [valu("v_pk_mul_f32", v(tb + 2 * i, 2), v(tb + 2 * i, 2), v(RL + 2 * qb, 2), mods="op_sel_hi:[1,0]")
                  for i in range(4)]
            c += [valu("v_cvt_pk_bf16_f32", v(tb + 8 + i), v(tb + 2 * i), v(tb + 2 * i + 1)) for i in range(4)]
            if qb < 4:
                c += [buf_store("buffer_store_dwordx4", v(tb + 8, 4), v(V_ST), s(S_O, 4), s(S_T1), qb * 1024,
                                CFG["o_st_flags"], tag=("ost", 0))]
            else:
                c += [salu("s_add_u32", s(S_KVO), s(S_T1), 4096),
                      buf_store("buffer_store_dwordx4", v(tb + 8, 4), v(V_ST), s(S_O, 4), s(S_KVO), 0,
                                CFG["o_st_flags"], tag=("ost", 0))]
    stamp(c, 6)
    return c


S2_WO, S2_OUT, S2_PART = 8, 4, 12
S2_ROT, S2_KO, S2_KW, S2_T0, S2_T1, S2_LO, S2_KB, S_SPIN, S_POLL = 25, 26, 27, 28, 29, 30, 31, 67, 101
S2_FL, S2_PLD = 48, 49
V2_DW, V2_DO, V2_RW, V2_RO, V2_ST, V2_PX, V2_T = 1, 5, 7, 9, 11, 12, 22
A2_OF, A2_WF = 0, 80
V2_ACC, V2_IN = 96, 176
WO_SLOT = [98304, 114688, 131072, 147456, 81920]
V2_RW2 = 216


def p2_kidx(m):
    S2_HL4 = 58
    if CFG["own_first"]:
        return [salu("s_add_u32", s(S2_T0), s(S2_ROT), m & 3), salu("s_and_b32", s(S2_T0), s(S2_T0), 3),
                salu("s_add_u32", s(S2_T0), s(S2_T0), s(S2_HL4)),
                salu("s_add_u32", s(S2_T0), s(S2_T0), m & ~3), salu("s_and_b32", s(S2_T0), s(S2_T0), 31),
                salu("s_lshl1_add_u32", s(S2_T0), s(S2_T0), s(S2_KB))]
    return rot_index(s(S2_T0), s(S2_ROT), m, CFG["orot"]) + \
        [salu("s_lshl_b32", s(S2_T0), s(S2_T0), 1), salu("s_add_u32", s(S2_T0), s(S2_T0), s(S2_KB))]


def p2_wo(m):
    sc = p2_kidx(m) + [salu("s_lshl_b32", s(S2_KW), s(S2_T0), 16),
                       salu("s_add_u32", "m0", s(S_LK), WO_SLOT[m % CFG["wo_slots"]])]
    return [(sc if rq == 0 else [], buf_dma(v(V2_DW + rq), s(S2_WO, 4), s(S2_KW), rq * 1024, CFG["wo_flags"],
                                            tag=("w", m))) for rq in range(4)]


def p2_o(m):
    sc = p2_kidx(m) + [salu("s_mul_i32", s(S2_KO), s(S2_T0), 10240),
                       salu("s_add_u32", "m0", s(S2_LO), (m % 4) * 20480)]
    out = [(sc if i == 0 else [], buf_dma(v(V2_DO), s(S_O, 4), s(S2_KO), i * 1024, CFG["o_ld_flags"], tag=("w", m)))
           for i in range(4)]
    out.append(([salu("s_add_u32", "m0", s(S2_LO), (m % 4) * 20480 + 4096)],
                buf_dma(v(V2_DO + 1), s(S_O, 4), s(S2_KO), 0, CFG["o_ld_flags"], tag=("w", m))))
    return out


def flat(pairs):
    return [x for sc, op in pairs for x in sc + [op]]


def p2_setup():
    sc = [salu("s_and_b32", s(56), s(S_HP), 7), salu("s_and_b32", s(57), s(S_B), 3)]
    if CFG["orot"] == 8:
        sc += [salu("s_lshl_b32", s(57), s(57), 1)]
    sc += [salu("s_add_u32", s(S2_ROT), s(56), s(57)), salu("s_lshl_b32", s(58), s(56), 2),
           salu("s_lshr_b32", s(S2_KB), s(S_HP), 3), salu("s_lshl_b32", s(S2_KB), s(S2_KB), 6),
           salu("s_mul_i32", s(S2_LO), s(S_W), 5120),
           salu("s_and_b32", s(S2_FL), s(S_MYFLAG), "0xffffff80"),
           salu("s_lshl_b32", s(56), s(56), 8)]
    sc.append([salu("s_add_u32", s(S_WOP), s(S_WOP), s(56)), salu("s_addc_u32", s(S_WOP + 1), s(S_WOP + 1), 0)])
    sc += [salu("s_sub_u32", s(57), 8388608, s(56))]
    srd(sc, S2_WO, s(S_WOP), s(S_WOP + 1), s(57))
    sc += [salu("s_mul_i32", s(57), s(S_B), 655360), salu("s_add_u32", s(56), s(56), s(57)),
           salu("s_lshl_b32", s(57), s(S_BR), 11), salu("s_add_u32", s(56), s(56), s(57))]
    sc.append([salu("s_add_u32", s(S_OUTP), s(S_OUTP), s(56)), salu("s_addc_u32", s(S_OUTP + 1), s(S_OUTP + 1), 0)])
    sc += [salu("s_sub_u32", s(57), 5242880, s(56))]
    srd(sc, S2_OUT, s(S_OUTP), s(S_OUTP + 1), s(57))
    sc += [salu("s_mul_i32", s(56), s(S_TILE), 40960), salu("s_add_u32", s(56), s(56), hex(PART_OFF))]
    sc.append([salu("s_add_u32", s(50), s(S_WS), s(56)), salu("s_addc_u32", s(51), s(S_WS + 1), 0)])
    sc.append([salu("s_bitcmp1_b32", s(S_HP), 3), salu("s_cselect_b32", s(S2_PLD), 0, "0x100000")])
    L, W, T0, T1 = v(V_T), v(V_T + 1), v(V_T + 4), v(V_T + 5)
    vc = [valu("v_lshrrev_b32", T0, 4, L), valu("v_lshlrev_b32", T0, 6, T0), valu("v_bfe_u32", T1, L, 2, 2),
          valu("v_lshl_add_u32", T0, T1, 11, T0), valu("v_and_b32", T1, 3, L), valu("v_lshl_add_u32", T0, T1, 4, T0),
          valu("v_lshl_add_u32", T0, W, 15, T0), valu("v_xor_b32", T1, 32, T0)]
    vc += [valu("v_add_u32", v(V2_DW + rq), 4 * rq * 2048 - rq * 1024, T1 if rq & 1 else T0) for rq in range(4)]
    vc += [valu("v_mul_u32_u24", T0, 5120, W), valu("v_lshl_add_u32", v(V2_DO), L, 4, T0),
           valu("v_add_u32", v(V2_DO + 1), 4096, v(V2_DO))]
    vc += [valu("v_lshrrev_b32", T0, 4, L), valu("v_lshlrev_b32", T0, 10, T0),
           valu("v_bfe_u32", T1, L, 2, 2), valu("v_lshl_add_u32", T0, T1, 6, T0),
           valu("v_bfe_u32", T1, L, 4, 1), valu("v_lshl_add_u32", T0, T1, 5, T0),
           valu("v_and_b32", T1, 3, L), valu("v_lshl_add_u32", T0, T1, 3, T0),
           valu("v_lshrrev_b32", T1, 1, W), valu("v_lshl_add_u32", T0, T1, 9, T0),
           valu("v_add_u32", v(V2_RW), 81920, T0), valu("v_xor_b32", v(V2_RW + 1), 32, v(V2_RW))]
    vc += [valu("v_and_b32", T0, 1, W), valu("v_mul_u32_u24", T0, 5120, T0),
           valu("v_lshl_add_u32", v(V2_RO), L, 4, T0), valu("v_add_u32", v(V2_RO + 1), 40960, v(V2_RO)),
           valu("v_and_b32", T0, 1, W), valu("v_mul_u32_u24", T0, 80, T0), valu("v_and_b32", T1, 15, L),
           valu("v_add_u32", T0, T0, T1), valu("v_lshlrev_b32", T0, 12, T0), valu("v_lshrrev_b32", T1, 4, L),
           valu("v_lshl_add_u32", T0, T1, 4, T0), valu("v_lshrrev_b32", T1, 1, W),
           valu("v_lshl_add_u32", v(V2_ST), T1, 7, T0),
           valu("v_mul_u32_u24", T0, 10240, W), valu("v_lshl_add_u32", v(V2_PX), L, 4, T0)]
    return sc, vc


A2_SEL = 248


def p2_selectors():
    L, T0, T1, T2 = v(V_T), v(V_T + 2), v(V_T + 3), v(V_T + 4)
    c = [valu("v_and_b32", T0, 1, L), valu("v_lshlrev_b32", T0, 4, T0), valu("v_mov_b32", T1, "0x3f80"),
         valu("v_lshlrev_b32", T0, T0, T1),
         valu("v_bfe_u32", T1, L, 3, 1), valu("v_lshrrev_b32", T2, 4, L), valu("v_sub_u32", T1, T2, T1),
         valu("v_bfe_u32", T2, L, 1, 2), valu("v_lshl_add_u32", T1, T1, 2, T2)]
    for h in range(2):
        for d in range(4):
            c += [valu("v_cmp_eq_u32", "vcc", 8 * h + d, T1), valu("v_cndmask_b32", T2, 0, T0),
                  valu("v_accvgpr_write_b32", a(A2_SEL + 4 * h + d), T2)]
    return c


def check(name, load, test, first=()):
    again = Ins(load.text, "other", uses=load.uses)
    OUTLINE.extend([label(f"{name}_slow")] + list(first) + [salu("s_mov_b32", s(S_SPIN), 200000), label(name), again,
                   raw("s_waitcnt vmcnt(0)")] + test() +
                   [raw(f"s_cbranch_scc1 {name}_ok", "branch"), raw("s_sleep 2"),
                    salu("s_sub_u32", s(S_SPIN), s(S_SPIN), 1), raw(f"s_cbranch_scc0 {name}", "branch"),
                    raw(f"s_branch {name}_ok", "branch")])
    return test() + [raw(f"s_cbranch_scc0 {name}_slow", "xbranch", uses={"scc"}), Ins(f"{name}_ok:", "xlabel")]


def phase2():
    one, zero, lane4, pf = v(V2_T + 7), v(V2_T + 1), v(V2_T + 5), v(V2_T + 2)
    flag_load = buf_load("buffer_load_dword", pf, lane4, s(S_FLAG, 4), s(S2_FL), 0, "sc1")
    part_load = buf_load("buffer_load_dword", pf, zero, s(S_FLAG, 4), s(S_PFLAG), 0, "sc1")
    flag_test = lambda: [valu("v_cmp_lt_u32", s(52, 2), s(S2_T1), pf), salu("s_cmp_eq_u64", s(52, 2), -1)]
    part_test = lambda: [valu("v_readfirstlane_b32", s(S_POLL), pf), salu("s_or_b32", s(S_POLL), s(S_POLL), s(S2_PLD)),
                         salu("s_cmp_ge_u32", s(S_POLL), 1)]
    c = [salu("s_or_b32", s(S2_T1), s(S_XCC), "0x100"), valu("v_mov_b32", one, s(S2_T1)),
         salu("s_movk_i32", s(S2_T1), "0xff")]
    srd(c, S2_PART, s(50), s(51), 40960)
    c += [waitvm(lambda t: t == ("ost", 0)),
          buf_store("buffer_store_dword", one, v(V_ONE), s(S_FLAG, 4), s(S_MYFLAG), 0, CFG["o_st_flags"],
                    tag=("flag", 0)),
          Ins("; local end", "mark", tag="end"), label("L_published")]
    stamp(c, 7)
    if CFG["own_first"]:
        c += [barrier()]
    else:
        c += [flag_load] + check("L_flag", flag_load, flag_test)
    stamp(c, 8)
    c += [x for m in range(CFG["o_pre"]) for x in flat(p2_o(m))]
    if CFG["wo_slots"] == 5:
        c += flat(p2_wo(4))
    c += [valu("v_add_u32", v(V2_RW2 + h), 131072 - 81920, v(V2_RW + h)) for h in range(2)]

    acc = lambda T, qb: V2_ACC + (T * 5 + qb) * 4
    wf = lambda m, st, T: A2_WF + 4 * ((8 * m + 2 * T + st) % 6)
    of = lambda m, st, qb: A2_OF + 20 * (2 * (m & 1) + st) + 4 * qb
    mf = []
    for m in range(32):
        for T in range(4):
            for qq in range(5):
                qb = qq if T % 2 == 0 else 4 - qq
                d = v(acc(T, qb), 4)
                for i in range(2):
                    st = (i + qq + T) & 1
                    mf.append(mfma(d, a(wf(m, st, T), 4), a(of(m, st, qb), 4), d if (m or i) else 0))
    sel = lambda pair: [mfma(v(acc(2 * pair + h, qb), 4), a(A2_SEL + 4 * h, 4), v(V2_IN + 4 * (pair * 5 + qb), 4),
                             v(acc(2 * pair + h, qb), 4)) for qb in range(5) for h in range(2)]
    mf = mf[:-20] + sel(0) + mf[-20:] + sel(1)
    G = Gaps(mf)

    def w_reads(m, st, T):
        slot = WO_SLOT[m % CFG["wo_slots"]]
        base, off = (V2_RW2, slot - 131072) if slot >= 131072 else (V2_RW, slot - 81920)
        return [ds_read("ds_read_b64_tr_b16", a(wf(m, st, T) + 2 * kt, 2), v(base + (T & 1)),
                        off + st * 8192 + kt * 4096 + (T >> 1) * 256) for kt in range(2)]

    def o_read(m, st, qb):
        return ds_read("ds_read_b128", a(of(m, st, qb), 4), v(V2_RO + ((m % 4) >> 1)),
                       (m & 1) * 20480 + st * 10240 + qb * 1024)

    BAR = 18
    c += [waitvm(lambda t: t == ("w", 0)), barrier()]
    c += [o_read(0, 0, 0)] + w_reads(0, 0, 0) + [o_read(0, 1, 0)] + w_reads(0, 1, 0)
    c += [o_read(0, (i + qb) & 1, qb) for qb in range(1, 5) for i in range(2)][:6] + [wait(lg=6)]
    c += [o_read(0, 0, 4), o_read(0, 1, 4)] + w_reads(0, 1, 1) + w_reads(0, 0, 1)
    for m in range(32):
        for T in range(4):
            for st in range(2):
                if m or T >= 2:
                    G.put(40 * m + 10 * (T - 2) + st, *w_reads(m, st ^ (T & 1), T))
        if m:
            g = 40 * (m - 1) + BAR + 1
            for qb in range(5):
                for i in range(2):
                    g = G.place(o_read(m, (i + qb) & 1, qb), g, g + 4) + (1 if i else 0)
            assert g < 40 * m - 2
    for m in range(31):
        G.put(40 * m + BAR, waitlds(), waitvm(lambda t, m=m: t == ("w", m + 1)), barrier())

    last = [0]

    def spread(pairs, g0, g1):
        for i, (sc, op) in enumerate(pairs):
            last[0] = G.with_scalars(sc, op, g0 + (g1 - g0) * i // max(len(pairs) - 1, 1), last[0])
        return last[0]

    if CFG["own_first"]:
        G.put(2, flag_load)
        G.put_seq(BAR - 2, *check("L_flag", flag_load, flag_test))
    lead = CFG["lead"]
    early = [x for m in range(CFG["o_pre"], 4) for x in p2_o(m)]
    spread(early[:5], 4, BAR - 3)
    wl = CFG["wo_slots"]
    for m in range(4, 32):
        g0 = 40 * (m - lead) + BAR + 4
        wo = p2_wo(m + wl - 4) if m + wl - 4 < 32 else []
        assert spread((early[5:] if m == 4 else []) + wo + p2_o(m), g0, g0 + 33) < g0 + 40
    pg = CFG["part_at"]
    G.put(pg - 50, part_load)
    G.put_seq(pg - 5, *check("L_part", part_load, part_test))
    pl = [([salu("s_add_u32", s(S2_T1), s(S2_PLD), (t // 4) * 4096)] if t % 4 == 0 else [],
           buf_load("buffer_load_dwordx4", v(V2_IN + 4 * t, 4), v(V2_PX), s(S2_PART, 4), s(S2_T1), (t % 4) * 1024,
                    "sc1", tag=("p", 0))) for t in range(10)]
    spread(pl, pg, min(pg + 45, 40 * 31 + 20))
    for k, m in enumerate((7, 23)):
        st = []
        stamp(st, 5 + k, group="z")
        G.put(40 * m + 39, *st)
    PS = [1, 3, 7, 11, 15, 19, 23, 27]
    for k, m in enumerate(PS):
        st = []
        stamp(st, 2 + k, group="p")
        G.put(40 * m + 39, *st)
    PK = 32
    role = [salu("s_bitcmp1_b32", s(S_HP), 3)]
    G.put(40 * 30 + 1, *role, *[salu("s_cselect_b32", s(S2_OUT + i), s(S2_OUT + i), s(S2_PART + i)) for i in range(3)])
    G.put(40 * 30 + 3, *role, salu("s_cselect_b64", "vcc", -1, 0))
    G.put(40 * 30 + 4, salu("s_movk_i32", s(52), 1024), salu("s_movk_i32", s(53), 5120))
    G.put(40 * 30 + 5, *role, salu("s_cselect_b32", s(52), 65536, s(52)), salu("s_cselect_b32", s(53), 64, s(53)))
    G.place(valu("v_cndmask_b32", v(V2_ST), v(V2_PX), v(V2_ST)), 40 * 30 + 6, 40 * 30 + 12)

    assert "sc1" in CFG["out_flags"]

    def tail(pair):
        out = []
        for qb in range(5):
            k = PK + 20 * pair + 4 * qb
            ops = [valu("v_cvt_pk_bf16_f32", v(k + 2 * h + i), v(acc(2 * pair + h, qb) + 2 * i),
                        v(acc(2 * pair + h, qb) + 2 * i + 1)) for h in range(2) for i in range(2)]
            out.append(ops)
        for op in ("v_permlane32_swap_b32", "v_permlane16_swap_b32"):
            out.append([perm(op, v(PK + 20 * pair + 4 * qb + i), v(PK + 20 * pair + 4 * qb + 2 + i))
                        for qb in range(5) for i in range(2)])
        for qb in range(5):
            off = salu("s_add_u32", s(S2_T0), s(S2_T0), s(52)) if qb else \
                salu("s_mov_b32", s(S2_T0), s(53) if pair else 0)
            out.append([off, buf_store("buffer_store_dwordx4", v(PK + 20 * pair + 4 * qb, 4), v(V2_ST),
                                       s(S2_OUT, 4), s(S2_T0), 0, CFG["out_flags"])])
        return [x for o in out for x in o]

    t0 = tail(0)
    g = len(mf) - 30 + 3
    while t0 and g < len(mf):
        n = 0
        while t0 and (n < 2 or not t0[0].cost):
            n += bool(t0[0].cost)
            G.put_seq(g, t0.pop(0))
        g += 1
    stamp(c, 1, group="p")
    c += G.flatten()
    stamp(c, 9)
    stamp(c, 10, group="p")
    c += t0 + tail(1)
    c += role + [raw("s_cbranch_scc1 L_done", "branch", uses={"scc"}), raw("s_waitcnt vmcnt(0)"),
                 raw(f"buffer_store_dword {one}, {v(V_ONE)}, {s(S_FLAG, 4)}, {s(S_PFLAG)} offen sc1")]
    c += [label("L_done")]
    stamp(c, 10)
    if CFG["stamps"]:
        c += [wait(vm=0)]
    stamp(c, 11)
    stamp(c, 11, group="p")
    if CFG.get("xcc"):
        c += [raw("s_getreg_b32 s81, hwreg(HW_REG_XCC_ID)", "salu", defs={"s81"}),
              salu("s_and_b32", s(81), s(81), 15), salu("s_add_u32", s(81), s(81), s(70))]
    return c


def kernel():
    OUTLINE.clear()
    c = [label("L_code0")]
    stamp(c, 0)
    c += k1_prologue_early()
    c += k1_qproj() + k1_attention() + phase2()
    if "probe" in CFG:
        c += [salu("s_cmp_lg_u32", s(2), 1), raw("s_cbranch_scc1 L_end", "branch"),
              salu("s_sub_u32", s(56), s(82 + CFG["probe"]), s(82)), salu("s_mul_i32", s(56), s(56), 10),
              salu("s_add_u32", s(56), s(56), s(93)), label("L_probe"),
              raw("s_memrealtime s[98:99]"), raw("s_waitcnt lgkmcnt(0)"), salu("s_sub_u32", s(57), s(98), s(56)),
              salu("s_cmp_lt_i32", s(57), 0), raw("s_cbranch_scc1 L_probe", "branch")]
    elif CFG.get("dbgstamps"):
        c += [salu("s_not_b32", s(56), s(82)), valu("v_mov_b32", v(2), s(56)),
              Ins(f"buffer_atomic_umax v2, {v(V_ONE)}, {s(S_DBG, 4)}, 0 offen offset:12 sc1", "vm_st", (), {"v2"})]
        for i in range(12):
            c += [valu("v_mov_b32", v(3 + i), s(82 + i)),
                  Ins(f"buffer_atomic_umax v{3 + i}, {v(V_ONE)}, {s(S_DBG, 4)}, 0 offen offset:{16 + 4 * i} sc1",
                      "vm_st", (), {f"v{3 + i}"})]
    else:
        store_stamps(c, 12, s(S_WS), s(S_WS + 1), 0x4000000, s(S_W))
    c += [label("L_end"), raw("s_endpgm")] + OUTLINE
    return c


def audit(code):
    phase, over, cnt, worst = "q", {}, {}, {}
    i = 0
    idx = [k for k, x in enumerate(code) if x.kind == "mfma"]
    for n, (k0, k1) in enumerate(zip(idx, idx[1:])):
        gap = [x for x in code[k0 + 1:k1] if x.kind not in ("label", "xlabel", "mark")]
        phase = "q" if n < 1280 else "att" if n < 2640 else "p2" if n < 3920 else "x"
        if len(gap) > 12:
            continue
        t = 4
        for x in gap:
            if x.cost:
                t = max(t, 8) + x.cost
            else:
                t += 4 * (x.tag if x.kind == "nop" else 1)
        if t > 16:
            over[phase] = over.get(phase, 0) + t - 16
            cnt[phase] = cnt.get(phase, 0) + 1
            key = (phase, tuple(x.kind for x in gap))
            worst[key] = worst.get(key, 0) + t - 16
    print("; overflow cycles", over, "gaps", cnt, file=sys.stderr)
    for k, x in sorted(worst.items(), key=lambda y: -y[1])[:24]:
        print(";   ", x, k, file=sys.stderr)


def finish(code, name):
    abl = CFG.get("abl", "")
    if abl:
        first = next(i for i, x in enumerate(code) if x.kind == "mfma")
        kinds = {"d": ("vm_dma", "vm_ld"), "r": ("ds_r",), "b": ("barrier",), "e": ("trans",)}
        drop = sum((kinds[k] for k in abl), ())
        last = next(i for i, x in enumerate(code) if x.text == "L_end:")
        keep = lambda x: x.tag in (("clr", 0), ("cnt", 0)) or "dword " in x.text
        code = [x for i, x in enumerate(code) if not (first < i < last and x.kind in drop and not keep(x))]
    code = insert_waits(code)
    code, pad = fix_hazards(code)
    i0 = next(i for i, x in enumerate(code) if x.kind == "mark" and x.tag == "begin")
    i1 = next(i for i, x in enumerate(code) if x.kind == "mark" and x.tag == "end")
    remote = [Ins(x.text + (" sc1" if x.kind == "vm_st" else ""), x.kind) for x in code[i0 + 1:i1]]
    if CFG.get("force_remote"):
        code[i0] = raw("s_branch L_remote")
    code = [x for x in code if x.kind != "mark"] + [label("L_remote")] + remote + [raw("s_branch L_published")]
    if CFG.get("audit"):
        audit(code)
    n = {k: sum(1 for i in code if i.kind == k) for k in ("mfma", "wait", "nop", "barrier")}
    print(f"; {name}: {len(code)} instrs, {n}, padded {pad} states", file=sys.stderr)
    return text(code)


DOC = """;
; Workgroup (branch, batch, head pair); wave (head, 80 query rows); v_mfma_f32_16x16x32_bf16 throughout.
;  4. Each workgroup accumulates a 160 x 128 output tile over its head group (half of K); head group 0 hands its
;
"""

KD = """.amdhsa_kernel {k}
  .amdhsa_next_free_vgpr 512
  .amdhsa_next_free_sgpr 102
  .amdhsa_accum_offset 256
  .amdhsa_group_segment_fixed_size 0
  .amdhsa_kernarg_size 104
  .amdhsa_user_sgpr_count 2
  .amdhsa_user_sgpr_kernarg_segment_ptr 1
  .amdhsa_system_sgpr_workgroup_id_x 1
.end_amdhsa_kernel
"""


def build(**cfg):
    CFG.update(cfg)
    ref = open(f"cdna_kernels/{NAME}.s.ref").read().splitlines()
    head = [l for l in ref if l.startswith(";") and "@launch" not in l and not l.startswith("; Override")
            and not l.startswith("; grid=ceil")]
    kernels = [(f"{NAME}_kernel", kernel())]
    out = "\n".join(head) + "\n; @launch grid=(256,1,1) block=(256,1,1) lds=163840\n"
    out += DOC + '.amdgcn_target "amdgcn-amd-amdhsa--gfx950"\n.text\n'
    for k, code in kernels:
        out += f".globl {k}\n.p2align 8\n.type {k},@function\n{k}:\n" + finish(code, k)
    out += '.section .rodata,"a"\n'
    for k, _ in kernels:
        out += ".p2align 6\n" + KD.format(k=k)
    return out


if __name__ == "__main__":
    cfg = {}
    path = f"cdna_kernels/{NAME}.s"
    for arg in sys.argv[1:]:
        if "=" in arg:
            k, val = arg.split("=", 1)
            cfg[k] = {"True": True, "False": False}.get(val, int(val) if val.isdigit() else val)
        else:
            path = arg
    open(path, "w").write(build(**cfg))
```

```python
import re


def R(prefix, lo, n=1):
    if n == 1:
        return f"{prefix}{lo}"
    return f"{prefix}[{lo}:{lo + n - 1}]"


_REG = re.compile(r"^-?(?:abs\()?([vas])(\d+)\)?$|^-?([vas])\[(\d+):(\d+)\]$")


def regs_of(op):
    op = str(op).strip()
    if op in ("m0", "vcc", "exec", "scc"):
        return {op}
    m = _REG.match(op)
    if not m:
        return set()
    if m.group(1):
        return {f"{m.group(1)}{m.group(2)}"}
    return {f"{m.group(3)}{i}" for i in range(int(m.group(4)), int(m.group(5)) + 1)}


class Ins:
    __slots__ = ("text", "kind", "defs", "uses", "tag", "need", "cost", "srcc", "wide")

    def __init__(self, text, kind, defs=(), uses=(), tag=None, need=None, srcc=(), wide=False):
        self.text = text
        self.kind = kind
        self.defs = set(defs)
        self.uses = set(uses)
        self.tag = tag
        self.need = need
        self.srcc = set(srcc)
        self.wide = wide
        self.cost = {"trans": 8, "valu": 4, "ds_r": 4, "ds_w": 4, "vm_ld": 4, "vm_dma": 4, "vm_st": 4,
                     "perm": 4}.get(kind, 0)

    def __repr__(self):
        return self.text


def _ru(*ops):
    s = set()
    for o in ops:
        s |= regs_of(o)
    return s


def mfma(d, a, b, c):
    return Ins(f"v_mfma_f32_16x16x32_bf16 {d}, {a}, {b}, {c}", "mfma", _ru(d), _ru(a, b, c), srcc=_ru(c))


_TRANS = ("v_exp_f32", "v_rcp_f32", "v_log_f32", "v_rsq_f32", "v_sqrt_f32")


def valu(op, d, *src, rmw=False, mods=""):
    kind = "trans" if op in _TRANS else "valu"
    uses = _ru(*src)
    if rmw:
        uses |= _ru(d)
    defs = _ru(d)
    if op.startswith("v_cndmask") and len(src) == 2:
        uses.add("vcc")
    txt = f"{op} {d}, " + ", ".join(str(s) for s in src) + (f" {mods}" if mods else "")
    return Ins(txt, kind, defs, uses)


def perm(op, a, b):
    return Ins(f"{op} {a}, {b}", "perm", _ru(a, b), _ru(a, b))


_NOSCC = ("s_mov_b32", "s_mov_b64", "s_mul_i32", "s_mul_hi_u32", "s_cselect_b32", "s_cselect_b64", "s_movk_i32",
          "s_getpc_b64", "s_getreg_b32")


def salu(op, d, *src):
    uses = _ru(*src)
    if op.startswith("s_cmp") or op.startswith("s_bitcmp"):
        return Ins(f"{op} {d}, " + ", ".join(str(s) for s in src), "salu", {"scc"}, uses | _ru(d))
    defs = _ru(d)
    if op not in _NOSCC:
        defs.add("scc")
    if op in ("s_cselect_b32", "s_cselect_b64", "s_addc_u32", "s_subb_u32"):
        uses.add("scc")
    if op in ("s_addk_i32", "s_mulk_i32"):
        uses |= _ru(d)
    if "saveexec" in op:
        defs.add("exec")
        uses.add("exec")
    txt = f"{op} {d}" + ("".join(f", {s}" for s in src))
    return Ins(txt, "salu", defs, uses)


def smem(op, d, base, off):
    return Ins(f"{op} {d}, {base}, {off}", "smem", _ru(d), _ru(base, off))


def ds_read(op, d, addr, off=0, tag=None):
    assert 0 <= off < 65536, off
    return Ins(f"{op} {d}, {addr}" + (f" offset:{off}" if off else ""), "ds_r", _ru(d), _ru(addr), tag=tag)


def ds_write(op, addr, data, off=0, tag=None):
    assert 0 <= off < 65536, off
    return Ins(f"{op} {addr}, {data}" + (f" offset:{off}" if off else ""), "ds_w", (), _ru(addr, data), tag=tag)


def buf_dma(voff, srd, soff, imm=0, flags="", tag=None):
    assert 0 <= imm < 4096
    t = f"buffer_load_dwordx4 {voff}, {srd}, {soff} offen" + (f" offset:{imm}" if imm else "") + \
        (f" {flags}" if flags else "") + " lds"
    return Ins(t, "vm_dma", (), _ru(voff, srd, soff) | {"m0"}, tag=tag)


def buf_load(op, d, voff, srd, soff, imm=0, flags="", tag=None):
    assert 0 <= imm < 4096
    t = f"{op} {d}, {voff}, {srd}, {soff} offen" + (f" offset:{imm}" if imm else "") + (f" {flags}" if flags else "")
    return Ins(t, "vm_ld", _ru(d), _ru(voff, srd, soff), tag=tag)


def buf_store(op, data, voff, srd, soff, imm=0, flags="", tag=None):
    assert 0 <= imm < 4096
    t = f"{op} {data}, {voff}, {srd}, {soff} offen" + (f" offset:{imm}" if imm else "") + (f" {flags}" if flags else "")
    return Ins(t, "vm_st", (), _ru(data, voff, srd, soff), tag=tag, wide=op.endswith(("x3", "x4")))


def raw(text, kind="other", defs=(), uses=()):
    return Ins(text, kind, defs, uses)


def barrier():
    return Ins("s_barrier", "barrier")


def label(name):
    return Ins(f"{name}:", "label")


def waitvm(pred):
    return Ins("; waitvm", "waitvm", need=pred)


def waitlds(pred=lambda t: True):
    return Ins("; waitlds", "waitlds", need=pred)


def nop(n):
    return Ins(f"s_nop {n - 1}", "nop", tag=n)


VM = ("vm_ld", "vm_dma", "vm_st")
LG = ("ds_r", "ds_w")


def _wait_text(vm, lg):
    parts = []
    if vm is not None:
        assert vm <= 63
        parts.append(f"vmcnt({vm})")
    if lg is not None:
        parts.append(f"lgkmcnt({min(lg, 15)})")
    return "s_waitcnt " + " ".join(parts)


class WaitState:
    def __init__(self):
        self.vm = []
        self.lg = []
        self.sm = []

    def apply(self, vm, lg):
        if vm is not None:
            self.vm = self.vm[len(self.vm) - vm:] if vm < len(self.vm) else self.vm
            if vm == 0:
                self.vm = []
        if lg is not None:
            if lg == 0:
                self.lg = []
                self.sm = []
            elif not self.sm and lg < len(self.lg):
                self.lg = self.lg[len(self.lg) - lg:]


AGE = 0


def insert_waits(code, st=None, hoist=True):
    st = st or WaitState()
    later = {}
    for i, ins in enumerate(code):
        if ins.kind in VM and ins.tag is not None:
            later[ins.tag] = i
    for i, ins in enumerate(code):
        if ins.kind == "waitvm":
            late = [t for t, j in later.items() if j > i and ins.need(t)]
            assert not late, f"loads {late} are issued after the wait that should cover them"
    out = []
    seq = 0
    shadow = None
    shadow_seq = None
    nm = 0
    born = {}
    for ins in code:
        touched = ins.uses | ins.defs
        vm_need = None
        lg_need = None
        if ins.kind == "waitvm":
            for i, (o, _) in enumerate(st.vm):
                if ins.need(o.tag):
                    vm_need = i
        elif ins.kind == "waitlds":
            for i, (o, _) in enumerate(st.lg):
                if ins.need(o.tag):
                    lg_need = i
        else:
            for i, (o, _) in enumerate(st.vm):
                if o.defs & touched:
                    vm_need = i
            for i, (o, _) in enumerate(st.lg):
                if o.defs & touched:
                    lg_need = i
        if AGE and lg_need is not None and ins.kind == "mfma":
            for i, (o, q) in enumerate(st.lg):
                if i > lg_need and nm - born[q] >= AGE:
                    lg_need = i
        sm_need = any(o.defs & touched for o in st.sm)
        if vm_need is not None or lg_need is not None or sm_need:
            at = len(out)
            limit = None
            if hoist and ins.kind == "mfma" and shadow is not None and not sm_need:
                ok = True
                if vm_need is not None and st.vm[vm_need][1] >= shadow_seq:
                    ok = False
                if lg_need is not None and st.lg[lg_need][1] >= shadow_seq:
                    ok = False
                if ok:
                    at, limit = shadow, shadow_seq
            def count(q, i):
                later = q[i + 1:]
                return len([1 for _, s in later if limit is None or s < limit])
            vm = count(st.vm, vm_need) if vm_need is not None else None
            lg = count(st.lg, lg_need) if lg_need is not None else None
            if sm_need or (lg is not None and st.sm):
                lg = 0
            if lg is not None and lg > 14:
                lg = 14
            w = Ins(_wait_text(vm, lg), "wait", tag=(vm, lg))
            out.insert(at, w)
            if vm_need is not None:
                st.vm = st.vm[vm_need + 1:]
            if lg == 0 and limit is None:
                st.lg = []
                st.sm = []
            elif lg_need is not None:
                st.lg = st.lg[lg_need + 1:]
        if ins.kind in ("waitvm", "waitlds"):
            continue
        if ins.kind == "wait":
            st.apply(*ins.tag)
        out.append(ins)
        if ins.kind in VM:
            st.vm.append((ins, seq))
            seq += 1
            assert len(st.vm) <= 63, "vmcnt overflow"
        elif ins.kind in LG:
            st.lg.append((ins, seq))
            born[seq] = nm
            seq += 1
        elif ins.kind == "smem":
            st.sm.append(ins)
        if ins.kind == "mfma":
            nm += 1
            shadow, shadow_seq = len(out), seq
        elif ins.kind in ("label", "branch", "barrier"):
            shadow = None
    merged = []
    for ins in out:
        if ins.kind == "wait" and merged and merged[-1].kind == "wait":
            pick = lambda x, y: y if x is None else x if y is None else min(x, y)
            vm, lg = (pick(x, y) for x, y in zip(merged[-1].tag, ins.tag))
            merged[-1] = Ins(_wait_text(vm, lg), "wait", tag=(vm, lg))
        else:
            merged.append(ins)
    return merged


def wait(vm=None, lg=None):
    return Ins(_wait_text(vm, lg), "wait", tag=(vm, lg))


VALUISH = ("valu", "trans", "perm")


def _required(prev, cur):
    n = 0
    pk, ck = prev.kind, cur.kind
    vdefs = {r for r in prev.defs if r[0] in "va" and r not in ("vcc",)}
    sdefs = {r for r in prev.defs if (r[0] == "s" and r != "scc") or r == "vcc"}
    if pk in VALUISH:
        if ck == "mfma" and vdefs & cur.uses:
            n = max(n, 2)
        if ck == "perm" and vdefs & cur.uses:
            n = max(n, 2)
        if ("readfirstlane" in cur.text or "readlane" in cur.text) and vdefs & cur.uses:
            n = max(n, 1)
        if "dpp" in cur.text or "row_" in cur.text or "quad_perm" in cur.text:
            if vdefs & cur.uses:
                n = max(n, 2)
        if ck in VM and sdefs & cur.uses:
            n = max(n, 5)
        if ck in VALUISH and sdefs & cur.uses:
            n = max(n, 2)
        if ck == "salu" and sdefs & cur.uses:
            n = max(n, 1)
        if ck in ("branch", "xbranch") and "vcc" in sdefs and "vcc" in cur.uses:
            n = max(n, 5)
        if pk == "trans" and ck in VALUISH and vdefs & cur.uses:
            n = max(n, 1)
        if "exec" in prev.defs and ck == "mfma":
            n = max(n, 4)
    if pk == "mfma":
        if ck == "mfma":
            ab = cur.uses - cur.srcc
            if prev.defs & ab:
                n = max(n, 8)
            if prev.defs & cur.srcc and prev.defs != cur.srcc:
                n = max(n, 6)
        elif prev.defs & (cur.uses | cur.defs):
            n = max(n, 8)
        if ck in VALUISH and prev.srcc & cur.defs:
            n = max(n, 3)
    if pk == "salu" and "m0" in prev.defs and ck == "vm_dma":
        n = max(n, 1)
    if pk == "vm_st" and prev.wide and ck in VALUISH and (prev.uses & cur.defs):
        n = max(n, 2)
    if pk == "vm_st" and prev.wide and ck in ("ds_r", "vm_ld", "mfma") and (prev.uses & cur.defs):
        n = max(n, 1)
    return n


def fix_hazards(code, history=()):
    out = []
    hist = [i for i in history if i.kind not in ("label", "xlabel")][-12:]
    padded = 0
    for ins in code:
        if ins.kind in ("label", "xlabel", "mark"):
            out.append(ins)
            continue
        need = 0
        dist = 0
        for p in reversed(hist):
            r = _required(p, ins)
            if r > dist:
                need = max(need, r - dist)
            dist += p.tag if p.kind == "nop" else 1
            if dist >= 12:
                break
        if need:
            n = nop(need)
            out.append(n)
            hist.append(n)
            padded += need
        out.append(ins)
        hist.append(ins)
        hist = hist[-14:]
    return out, padded


def text(code):
    return "\n".join(("" if i.kind in ("label", "xlabel") else "    ") + i.text for i in code) + "\n"


class Gaps:
    def __init__(self, mfmas):
        self.m = list(mfmas)
        self.s = [[] for _ in self.m]
        self.v = [[] for _ in self.m]

    def load(self, g):
        busy = 4 if any(i.kind == "barrier" for i in self.s[g]) else 0
        return sum(i.cost for i in self.v[g]) + busy

    def put(self, g, *ins):
        for i in ins:
            (self.v if i.cost else self.s)[g].append(i)

    def put_seq(self, g, *ins):
        self.v[g].extend(ins)

    def place(self, ins, lo, hi, cap=8):
        hi = min(hi, len(self.m) - 1)
        for g in range(lo, hi + 1):
            if self.load(g) + ins.cost <= cap:
                self.put(g, ins)
                return g
        g = min(range(lo, hi + 1), key=self.load)
        self.put(g, ins)
        return g

    def with_scalars(self, sc, op, g, prev):
        g = self.place(op, max(g, prev + (2 if sc else 1)), g + 6)
        free = [k for k in range(prev + 1, g) if self.load(k) < 8 and
                not any(i.kind == "barrier" for i in self.s[k])] or list(range(prev + 1, g))
        free = free[-len(sc):] if sc else []
        for i, o in enumerate(sc):
            self.put(free[i * len(free) // len(sc)], o)
        return g

    def schedule(self, ops, cap=8):
        at = [None] * len(ops)
        todo = set(range(len(ops)))
        over = 0
        g = min(o["lo"] for o in ops)
        while todo:
            assert g < len(self.m), "ran out of gaps"
            ready = [i for i in todo if ops[i]["lo"] <= g and
                     all(at[d] is not None and at[d] < g for d in ops[i].get("deps", ()))]
            ready.sort(key=lambda i: (ops[i]["hi"], i))
            for i in ready:
                fits = self.load(g) + ops[i]["ins"].cost <= cap
                if fits or ops[i]["hi"] <= g:
                    over += not fits
                    self.put(g, ops[i]["ins"])
                    at[i] = g
                    todo.discard(i)
            g += 1
        late = [i for i in range(len(ops)) if at[i] > ops[i]["hi"]]
        assert not late, [(ops[i]["ins"], at[i], ops[i]["hi"]) for i in late]
        return over

    def flatten(self):
        out = []
        for m, s, v in zip(self.m, self.s, self.v):
            out.append(m)
            out.extend(s)
            out.extend(v)
        return out
```

```python
import struct
import sys

sys.path.insert(0, "tools")
from asmir import *

NAME = "concat_heads__mha_block_cached__mha_block_cached__near_ridge"
SCALE = struct.unpack("<I", struct.pack("<f", 128 ** -0.5 * 1.4426950408889634))[0]

CFG = dict(
    kv_flags="nt",
    xw_flags="",
    wo_flags="",
    o_st_flags="",
    o_ld_flags="sc1",
    stamps=False,
    qrot=2,
    orot=8,
    touch=True,
    kv_q=16,
    kv_c=6,
    kv_x=6,
    kv_end=1160,
    stash="6:2,8:2,10:2,12:2",
    st_short="4", st_long="",
    slow=5, fast=6, lat=55, wo_end=1190,
    tlb=True, own_first=False, odd_only=True, dense=False, age=0, lead=4, wo_slots=4, o_pre=2, part_at=1190,
    wo_warm="",
    out_flags="sc1", cap_early=False, kv_first=4, cluster=False,
    kv_cap=0,
)
FLAG_OFF = 0x2000000
PFLAG = 0x2000
PART_OFF = 0x2800000
NEVER = 0x7ffffff0

v = lambda i, n=1: R("v", i, n)
a = lambda i, n=1: R("a", i, n)
s = lambda i, n=1: R("s", i, n)


def srd(code, base, lo, hi, size):
    code += [salu("s_mov_b32", s(base), lo), salu("s_and_b32", s(base + 1), hi, "0xffff"),
             salu("s_mov_b32", s(base + 2), size), salu("s_mov_b32", s(base + 3), "0x20000")]


def add64(code, lo, hi, off):
    code += [salu("s_add_u32", lo, lo, off), salu("s_addc_u32", hi, hi, 0)]


def stamp(code, idx, sreg=96, group="main"):
    if CFG["stamps"] and (idx == 0 or CFG.get("stgroup", "main") == group):
        code += [raw(f"s_memtime s[{sreg}:{sreg + 1}]", "smem", defs={f"s{sreg}", f"s{sreg + 1}"}),
                 raw(f"s_memrealtime s[{sreg + 2}:{sreg + 3}]", "smem", defs={f"s{sreg + 2}", f"s{sreg + 3}"}),
                 salu("s_mov_b32", s(70 + idx), s(sreg)), salu("s_mov_b32", s(82 + idx), s(sreg + 2))]


def store_stamps(code, n, ws_lo, ws_hi, region, s_w):
    if not CFG["stamps"]:
        return
    code += [salu("s_add_u32", s(60), ws_lo, hex(region)), salu("s_addc_u32", s(61), ws_hi, 0)]
    srd(code, 64, s(60), s(61), hex(256 * 4 * 128))
    code += [salu("s_lshl_b32", s(62), s(2), 9), salu("s_lshl_b32", s(63), s_w, 7),
             salu("s_add_u32", s(62), s(62), s(63)), valu("v_mov_b32", v(1), 0)]
    for i in range(n):
        code += [valu("v_mov_b32", v(2), s(70 + i)),
                 buf_store("buffer_store_dword", v(2), v(1), s(64, 4), s(62), 4 * i),
                 valu("v_mov_b32", v(3), s(82 + i)),
                 buf_store("buffer_store_dword", v(3), v(1), s(64, 4), s(62), 64 + 4 * i)]


S_X, S_WQ, S_K, S_V, S_O = 4, 8, 12, 16, 20
S_W, S_ROT, S_KX, S_KW, S_T0, S_T1, S_LX, S_LW, S_LK, S_OFF = 24, 25, 26, 27, 28, 29, 30, 31, 32, 33
S_WS = 34
S_WOP, S_OUTP = 68, 94
S_KVO = 100
QSLOT = 53248
XB = 20480
V_DX = 1
V_DW = 3
V_RX = 4
V_RW = 7
V_DK = 13
V_RK = 17
V_RV = 19
V_ST = 21
V_T = 22
V_Q, V_S, V_P, V_NM, V_KF, V_VF = 32, 112, 152, 192, 212, 228
V_ACC = 96
A_O, A_L, A_ONE = 0, 160, 180
A_XF, A_WF = 0, 80
A_SHORT, A_LONG = 104, 216
A_KF = 184
V_DUMP = 28


S_FLAG, S_DBG, S_CODE = 36, 40, 44
S_BR, S_B, S_HP, S_MYFLAG = 60, 61, 62, 63
S_TILE, S_PFLAG, S_XCC, S_WARM = 64, 65, 66, 101
S_ODDM, S_ODDO, S_EVENO, S_ODDX = 67, 3, 101, 54
V_ONE = 31


def k1_prologue_early():
    c = [salu("s_cmp_ge_u32", s(2), 256), raw("s_cbranch_scc1 L_end", "branch", uses={"scc"})]
    R_ = CFG["qrot"]
    c += [salu("s_xor_b32", s(3), s(2), CFG.get("swap", 0)),
          salu("s_and_b32", s(56), s(3), 7), salu("s_lshr_b32", s(57), s(3), 3),
          salu("s_lshr_b32", s(S_BR), s(56), 2),
          salu("s_mul_i32", s(58), s(S_BR), 40),
          salu("s_add_u32", s(46), s(0), s(58)), salu("s_addc_u32", s(47), s(1), 0),
          smem("s_load_dwordx8", s(48, 8), s(46, 2), 0),
          smem("s_load_dwordx4", s(64, 4), s(0, 2), 88),
          smem("s_load_dwordx2", s(S_WOP, 2), s(46, 2), 32), smem("s_load_dwordx2", s(S_OUTP, 2), s(0, 2), 80),
          salu("s_bfe_u32", s(S_B), s(56), "0x10001"), salu("s_lshl_b32", s(S_B), s(S_B), 2),
          salu("s_and_b32", s(58), s(57), 3), salu("s_add_u32", s(S_B), s(S_B), s(58)),
          salu("s_lshr_b32", s(59), s(57), 2),
          salu("s_and_b32", s(S_HP), s(56), 1), salu("s_lshl_b32", s(S_HP), s(S_HP), 3),
          salu("s_add_u32", s(S_HP), s(S_HP), s(59))]
    if R_ == 8:
        c += [salu("s_lshl_b32", s(58), s(58), 1)]
    c += [salu("s_add_u32", s(S_ROT), s(58), s(59))]
    L, W, T0, T1, T2 = v(V_T), v(V_T + 1), v(V_T + 2), v(V_T + 3), v(V_T + 4)
    c += [valu("v_and_b32", L, 63, v(0)), valu("v_lshrrev_b32", W, 6, v(0)),
          valu("v_readfirstlane_b32", s(S_W), W)]
    c += [valu("v_bfe_u32", T0, L, 2, 3), valu("v_lshlrev_b32", T0, 11, T0),
          valu("v_lshrrev_b32", T1, 5, L), valu("v_lshl_add_u32", T0, T1, 6, T0),
          valu("v_mul_u32_u24", T1, 81920, W), valu("v_add_u32", T0, T0, T1),
          valu("v_and_b32", T1, 3, L), valu("v_and_b32", T2, 1, W), valu("v_lshlrev_b32", T2, 1, T2),
          valu("v_xor_b32", T1, T1, T2), valu("v_lshl_add_u32", v(V_DX), T1, 4, T0),
          valu("v_xor_b32", v(V_DX + 1), 32, v(V_DX))]
    c += [valu("v_bfe_u32", T0, L, 4, 1), valu("v_bfe_u32", T1, L, 2, 2),
          valu("v_lshl_add_u32", T1, T0, 3, T1), valu("v_lshlrev_b32", T1, 13, T1),
          valu("v_lshrrev_b32", T2, 5, L), valu("v_lshl_add_u32", T1, T2, 6, T1),
          valu("v_and_b32", T2, 3, L), valu("v_lshlrev_b32", T0, 1, T0), valu("v_xor_b32", T2, T2, T0),
          valu("v_lshl_add_u32", T1, T2, 4, T1), valu("v_lshl_add_u32", v(V_DW), W, 7, T1)]
    c += [salu("s_mul_i32", s(S_LX), s(S_W), 5120),
          salu("s_lshl_b32", s(S_LW), s(S_W), 13), salu("s_add_u32", s(S_LW), s(S_LW), XB),
          salu("s_mul_i32", s(56), s(S_B), 327680), salu("s_lshl_b32", s(58), s(S_HP), 9),
          salu("s_sub_u32", s(57), 8388608, s(58))]
    stamp(c, 1, group="s")
    add64(c, s(48), s(49), s(56))
    srd(c, S_X, s(48), s(49), 327680)
    add64(c, s(54), s(55), s(58))
    srd(c, S_WQ, s(54), s(55), s(57))
    c += [salu("s_lshl_b32", s(56), s(S_B), 22), salu("s_lshl_b32", s(57), s(S_HP), 18),
          salu("s_add_u32", s(56), s(56), s(57))]
    add64(c, s(50), s(51), s(56))
    add64(c, s(52), s(53), s(56))
    if CFG["tlb"]:
        c += [smem("s_load_dword", s(48), s(50, 2), 0), smem("s_load_dword", s(49), s(52, 2), 0)]
    return c


def touch_code(lo, hi):
    if not CFG["touch"]:
        return []
    return [raw(f"s_mov_b32 s{S_T0}, ({lo} - L_code0) & 0xffffff80", "salu", defs={f"s{S_T0}"}),
            raw(f"s_mov_b32 s{S_CODE + 2}, {hi} - L_code0", "salu", defs={f"s{S_CODE + 2}"}),
            buf_load("buffer_load_dword", v(V_TCH + 1), v(V_TCH), s(S_CODE, 4), s(S_T0), 0, tag=("t", lo))]


V_TCH = 29


def k1_prologue_late():
    c = []
    L, W, T0, T1, T2, T3 = v(V_T), v(V_T + 1), v(V_T + 2), v(V_T + 3), v(V_T + 4), v(V_T + 5)
    c += [salu("s_mov_b32", s(S_WS), s(66)), salu("s_mov_b32", s(S_WS + 1), s(67))]
    srd(c, S_DBG, s(64), s(65), 256)
    c += [salu("s_add_u32", s(58), s(S_WS), hex(FLAG_OFF)), salu("s_addc_u32", s(59), s(S_WS + 1), 0)]
    srd(c, S_FLAG, s(58), s(59), hex(2 * PFLAG))
    c += [salu("s_lshl_b32", s(56), s(S_BR), 3), salu("s_add_u32", s(56), s(56), s(S_B)),
          salu("s_lshl_b32", s(57), s(56), 4), salu("s_add_u32", s(57), s(57), s(S_HP)),
          salu("s_lshl_b32", s(57), s(57), 2), salu("s_add_u32", s(57), s(57), s(S_W)),
          salu("s_lshl_b32", s(S_MYFLAG), s(57), 2),
          salu("s_lshl_b32", s(56), s(56), 3), salu("s_and_b32", s(57), s(S_HP), 7),
          salu("s_add_u32", s(S_TILE), s(56), s(57)),
          salu("s_lshl_b32", s(57), s(S_TILE), 2), salu("s_add_u32", s(57), s(57), s(S_W)),
          salu("s_lshl_b32", s(57), s(57), 2), salu("s_add_u32", s(S_PFLAG), s(57), hex(PFLAG)),
          salu("s_bitcmp1_b32", s(S_HP), 3), salu("s_cselect_b32", s(56), hex(4 * PFLAG), s(S_PFLAG))]
    c += [valu("v_mov_b32", v(V_ONE), hex(NEVER)), valu("v_cmp_ne_u32", "vcc", 0, L),
          valu("v_cndmask_b32", v(V_ONE), 0, v(V_ONE)), valu("v_mov_b32", T0, 0),
          raw(f"s_getreg_b32 s{S_XCC}, hwreg(HW_REG_XCC_ID, 0, 4)", "salu", defs={f"s{S_XCC}"}),
          valu("v_mov_b32", T1, s(S_XCC)),
          buf_store("buffer_store_dword", T1, v(V_ONE), s(S_FLAG, 4), s(S_MYFLAG), 0, "sc1", tag=("clr", 0)),
          buf_store("buffer_store_dword", T0, v(V_ONE), s(S_FLAG, 4), s(56), 0, "sc1", tag=("clr", 0))]
    if CFG["touch"]:
        c += [raw("s_getpc_b64 s[58:59]", "salu", defs={"s58", "s59"}), label("L_pc"),
              raw("s_sub_u32 s58, s58, L_pc - L_code0", "salu", defs={"s58", "scc"}, uses={"s58"}),
              salu("s_subb_u32", s(59), s(59), 0)]
        srd(c, S_CODE, s(58), s(59), 0)
        c += [salu("s_lshr_b32", s(56), s(2), 3), salu("s_lshl_b32", s(56), s(56), 7),
              valu("v_lshlrev_b32", T0, 12, v(0)), valu("v_add_u32", T0, s(56), T0),
              valu("v_mov_b32", v(V_TCH), hex(NEVER)), valu("v_cmp_gt_u32", "vcc", 32, v(0)),
              valu("v_cndmask_b32", v(V_TCH), v(V_TCH), T0)]
        c += touch_code("L_code0", "L_att")
    c += [valu("v_bfe_u32", T0, L, 3, 1), valu("v_and_b32", T1, 7, L), valu("v_lshlrev_b32", T1, 6, T1),
          valu("v_lshl_add_u32", T1, T0, 10, T1), valu("v_lshrrev_b32", T2, 4, L),
          valu("v_lshlrev_b32", T0, 1, T0), valu("v_xor_b32", T2, T2, T0), valu("v_lshl_add_u32", T1, T2, 4, T1),
          valu("v_and_b32", T0, 1, W), valu("v_mul_u32_u24", T0, 10240, T0), valu("v_add_u32", v(V_RX), T0, T1),
          valu("v_add_u32", v(V_RX + 1), QSLOT, v(V_RX)), valu("v_add_u32", v(V_RX + 2), 2 * QSLOT, v(V_RX))]
    c += [valu("v_lshrrev_b32", T0, 5, L), valu("v_lshlrev_b32", T0, 11, T0),
          valu("v_bfe_u32", T1, L, 2, 2), valu("v_lshl_add_u32", T0, T1, 6, T0),
          valu("v_bfe_u32", T1, L, 4, 1), valu("v_mul_u32_u24", T1, 288, T1), valu("v_add_u32", T0, T0, T1),
          valu("v_and_b32", T1, 3, L), valu("v_lshl_add_u32", T0, T1, 3, T0),
          valu("v_lshrrev_b32", T1, 1, W), valu("v_lshl_add_u32", T0, T1, 14, T0),
          valu("v_add_u32", v(V_RW), XB, T0), valu("v_xor_b32", v(V_RW + 1), 32, v(V_RW))]
    for sl in (1, 2):
        c += [valu("v_add_u32", v(V_RW + 2 * sl), sl * QSLOT, v(V_RW)),
              valu("v_add_u32", v(V_RW + 2 * sl + 1), sl * QSLOT, v(V_RW + 1))]
    c += [valu("v_bfe_u32", T0, L, 2, 2), valu("v_lshlrev_b32", T0, 8, T0),
          valu("v_lshrrev_b32", T1, 4, L), valu("v_lshl_add_u32", T0, T1, 6, T0),
          valu("v_and_b32", T1, 3, L), valu("v_lshl_add_u32", T0, T1, 4, T0),
          valu("v_lshrrev_b32", T1, 1, W), valu("v_lshl_add_u32", T0, T1, 17, T0),
          valu("v_and_b32", T1, 1, W), valu("v_lshl_add_u32", v(V_DK), T1, 12, T0)]
    for rq in (1, 2, 3):
        c += [valu("v_xor_b32", v(V_DK + rq), 16 * rq, v(V_DK))]
    c += [valu("v_bfe_u32", T0, L, 2, 2), valu("v_and_b32", T1, 3, L), valu("v_lshlrev_b32", T1, 6, T1),
          valu("v_lshl_add_u32", T1, T0, 10, T1), valu("v_lshrrev_b32", T2, 5, L), valu("v_xor_b32", T2, T2, T0),
          valu("v_lshl_add_u32", T1, T2, 4, T1), valu("v_bfe_u32", T2, L, 4, 1),
          valu("v_lshl_add_u32", T1, T2, 3, T1), valu("v_lshrrev_b32", T3, 1, W),
          valu("v_lshl_add_u32", T1, T3, 13, T1), valu("v_add_u32", v(V_RK), 2 * 32768, T1),
          valu("v_xor_b32", v(V_RK + 1), 32, v(V_RK))]
    c += [valu("v_lshrrev_b32", T0, 4, L), valu("v_lshlrev_b32", T0, 10, T0),
          valu("v_bfe_u32", T1, L, 2, 2), valu("v_lshl_add_u32", T0, T1, 6, T0),
          valu("v_bfe_u32", T1, L, 4, 1), valu("v_lshl_add_u32", T0, T1, 5, T0),
          valu("v_and_b32", T1, 3, L), valu("v_lshl_add_u32", T0, T1, 3, T0),
          valu("v_lshl_add_u32", T0, T3, 13, T0), valu("v_add_u32", v(V_RV), 2 * 32768 + 16384, T0),
          valu("v_xor_b32", v(V_RV + 1), 32, v(V_RV))]
    c += [valu("v_mul_u32_u24", T0, 40960, T3), valu("v_and_b32", T1, 1, W), valu("v_mul_u32_u24", T1, 5120, T1),
          valu("v_lshl_add_u32", T0, L, 4, T0), valu("v_add_u32", v(V_ST), T0, T1)]
    c += [valu("v_lshlrev_b32", T0, 12, W), valu("v_lshl_add_u32", v(V_DUMP), L, 4, T0)]
    c += [valu("v_mov_b32", T0, "0x3f803f80")]
    for i in range(4):
        c += [valu("v_accvgpr_write_b32", a(A_ONE + i), T0)]
    c += p2_selectors()
    srd(c, S_K, s(50), s(51), 262144)
    srd(c, S_V, s(52), s(53), 262144)
    c += [salu("s_lshl_b32", s(56), s(S_BR), 3), salu("s_add_u32", s(56), s(56), s(S_B)),
          salu("s_mul_i32", s(56), s(56), 1310720),
          salu("s_add_u32", s(58), s(S_WS), s(56)), salu("s_addc_u32", s(59), s(S_WS + 1), 0)]
    srd(c, S_O, s(58), s(59), 1310720)
    c += [salu("s_mul_i32", s(S_OFF), s(S_HP), 81920), salu("s_lshl_b32", s(S_LK), s(S_W), 12)]
    if CFG["odd_only"]:
        c += [salu("s_bitcmp1_b32", s(S_XCC), 0), salu("s_cselect_b32", s(S_ODDM), "0x28000", 0),
              salu("s_cselect_b32", s(S_ODDO), "0x100000", 0), salu("s_cselect_b32", s(S_EVENO), 0, "0x100000"),
              salu("s_cselect_b64", s(S_ODDX, 2), -1, 0)]
    if CFG["wo_warm"]:
        srd(c, 52, s(S_WOP), s(S_WOP + 1), 8388608)
        c += [salu("s_lshl_b32", s(56), s(S_B), 4), salu("s_add_u32", s(56), s(56), s(S_HP)),
              salu("s_lshl_b32", s(S_WARM), s(56), 16),
              valu("v_mul_u32_u24", T1, warm_lanes(), W), valu("v_add_u32", T1, T1, L),
              valu("v_lshlrev_b32", T1, 7, T1), valu("v_mov_b32", v(V_T + 2), hex(NEVER)),
              valu("v_cmp_gt_u32", "vcc", warm_lanes(), L), valu("v_cndmask_b32", v(V_T + 2), v(V_T + 2), T1)]
    if CFG["kv_cap"]:
        c += [raw("s_getreg_b32 s56, hwreg(HW_REG_XCC_ID)", "salu", defs={"s56"}),
              salu("s_bitcmp1_b32", s(56), 0), salu("s_cselect_b64", "vcc", -1, 0)]
    return c


def warm_lanes():
    return -(-128 // len(ints(CFG["wo_warm"])))


def rot_index(dst, rot, n, R_):
    if R_ == 1:
        return [salu("s_mov_b32", dst, n)]
    c = [salu("s_add_u32", dst, rot, n & (R_ - 1)), salu("s_and_b32", dst, dst, R_ - 1)]
    if n & ~(R_ - 1):
        c += [salu("s_or_b32", dst, dst, n & ~(R_ - 1))]
    return c


def q_stage_ops(j):
    sl = (j % 3) * QSLOT
    setup = rot_index(s(S_T0), s(S_ROT), j, CFG["qrot"])
    setup += [salu("s_lshl_b32", s(S_KX), s(S_T0), 7), salu("s_lshl_b32", s(S_KW), s(S_T0), 19)]
    ops = []
    for n in range(8):
        st, gu, hf = n >> 2, (n >> 1) & 1, n & 1
        ops.append((salu("s_add_u32", "m0", s(S_LW), sl + n * 1024),
                    salu("s_add_u32", s(S_T1), s(S_KW), (32 * st + 16 * gu + 4 * hf) * 8192),
                    buf_dma(v(V_DW), s(S_WQ, 4), s(S_T1), 0, CFG["xw_flags"], tag=("q", j))))
    xo = []
    for t in range(5):
        xo.append((salu("s_add_u32", "m0", s(S_LX), sl + t * 1024),
                   salu("s_add_u32", s(S_T1), s(S_KX), t * 16384),
                   buf_dma(v(V_DX + (t & 1)), s(S_X, 4), s(S_T1), 0, CFG["xw_flags"], tag=("q", j))))
    order = [xo[0], ops[0], ops[1], xo[1], ops[2], ops[3], xo[2], ops[4], xo[3], ops[5], ops[6], xo[4], ops[7]]
    if j == 0:
        order = [ops[0], xo[0], ops[1], xo[1], ops[2], xo[2], ops[3], xo[3], xo[4]] + ops[4:]
        for _, _, d in order[:9]:
            d.tag = ("q", -1)
    return setup, order


OUTLINE = []


def even_cap():
    if CFG.get("cap_all"):
        return [wait(vm=CFG["kv_cap"])]
    k = len(OUTLINE)
    OUTLINE.extend([label(f"L_cap{k}"), raw(f"s_waitcnt vmcnt({CFG['kv_cap']})"), raw(f"s_branch L_capback{k}")])
    return [raw(f"s_cbranch_vccz L_cap{k}", "xbranch", uses={"vcc"}), Ins(f"L_capback{k}:", "xlabel")]


def ints(x):
    return [int(y) for y in str(x).split(",") if y != ""]


class KVStream:
    def __init__(self):
        short, long_ = ints(CFG["st_short"]), ints(CFG["st_long"])
        nst = sum(int(x.split(":")[1]) for x in CFG["stash"].split(",") if x)
        assert nst % 4 == 0
        cand = [(c, isv) for c in short + long_ for isv in range(2)][:nst // 4]
        self.reg = {}
        ns = nl = 0
        for c, isv in cand:
            if c in short:
                self.reg[(c, isv)] = A_SHORT + 16 * ns
                ns += 1
            else:
                self.reg[(c, isv)] = A_LONG + 16 * nl
                nl += 1
        assert A_SHORT + 16 * ns <= A_ONE and A_LONG + 16 * nl <= 248
        self.parked = [(c, isv, rq) for c, isv in cand for rq in range(4)]
        self.dma = [(c, isv, rq) for c in range(16) for isv in range(2)
                    if (c, isv) not in self.reg or CFG["odd_only"] for rq in range(4)]

    def left(self):
        return len(self.dma)

    def peek(self):
        return self.dma[0][:2]

    @staticmethod
    def voff(isv, rq):
        return v(V_DK + (rq if not isv else 2 * (rq & 1)))

    def next(self):
        c, isv, rq = self.dma.pop(0)
        sc = []
        if rq == 0:
            sc = [salu("s_add_u32", "m0", s(S_LK), ((c + 2) % 5) * 32768 + isv * 16384),
                  salu("s_mov_b32", s(S_KVO), c * 8192)]
            if (c, isv) in self.reg:
                sc = [[sc[0], salu("s_max_u32", "m0", "m0", s(S_ODDM))],
                      salu("s_add_u32", s(S_KVO), s(S_ODDO), c * 8192)]
        return sc, buf_dma(self.voff(isv, rq), s(S_V if isv else S_K, 4), s(S_KVO), rq * 1024, CFG["kv_flags"],
                           tag=("v" if isv else "k", c))

    def next_parked(self):
        c, isv, rq = self.parked.pop(0)
        sc = [salu("s_add_u32", s(S_KVO), s(S_EVENO), c * 8192) if CFG["odd_only"] else
              salu("s_mov_b32", s(S_KVO), c * 8192)] if rq == 0 else []
        return sc, buf_load("buffer_load_dwordx4", a(self.reg[(c, isv)] + 4 * rq, 4), self.voff(isv, rq),
                            s(S_V if isv else S_K, 4), s(S_KVO), rq * 1024, CFG["kv_flags"], tag=("park", c))

    def dump(self, c, isv):
        t = v(V_T + 3)
        wr = [ds_write("ds_write_b128", t, a(self.reg[(c, isv)] + 4 * rq, 4), rq * 1024) for rq in range(4)]
        if CFG["odd_only"]:
            wr = [[salu("s_mov_b64", "exec", s(S_ODDX, 2)), w, salu("s_mov_b64", "exec", -1)] for w in wr]
        return [valu("v_add_u32", t, ((c + 2) % 5) * 32768 + isv * 16384, v(V_DUMP))] + wr

    def place(self, G, positions, free_from, cap=True):
        last = -10
        for g in positions:
            g = max(int(g), free_from(*self.peek()), last + (3 if self.dma[0][2] == 0 else 1))
            sc, d = self.next()
            for i, o in enumerate(sc):
                G.put(g - 2 + i, *(o if isinstance(o, list) else [o]))
            last = G.place(d, g, g + 2)
            if CFG["kv_cap"] and cap:
                G.put(last, *even_cap())
        return last


KV = None


def acc_q(T, qb):
    return v(V_ACC + (qb * 8 + T) * 4, 4)


def k1_qproj():
    pre = []
    setup, order = q_stage_ops(0)
    pre += setup
    for m0, so, dma in order:
        pre += [m0, so, dma]
    stamp(pre, 2, group="s")
    pre += k1_prologue_late()
    stamp(pre, 3, group="s")
    wf = lambda j, st, T: A_WF + 4 * ((16 * j + (8 * st + T if j == 0 else 2 * T + st)) % 6)
    xf = lambda j, st, qb: A_XF + 20 * (2 * (j & 1) + st) + 4 * qb
    mf = []
    for j in range(16):
        seq = [(st, T, qq) for st in range(2) for T in range(8) for qq in range(5)] if j == 0 else \
              [((i + qq + T) & 1, T, qq) for T in range(8) for qq in range(5) for i in range(2)]
        for st, T, qq in seq:
            qb = qq if T % 2 == 0 else 4 - qq
            d = acc_q(T, qb)
            mf.append(mfma(d, a(wf(j, st, T), 4), a(xf(j, st, qb), 4), 0 if (j == 0 and st == 0) else d))
    G = Gaps(mf)

    def a_reads(j, st, T):
        base = v(V_RW + 2 * (j % 3) + (T & 1))
        return [ds_read("ds_read_b64_tr_b16", a(wf(j, st, T) + 2 * hf, 2), base,
                        (T >> 2) * 8192 + st * 4096 + hf * 1024 + ((T >> 1) & 1) * 512) for hf in range(2)]

    def b_read(j, st, qb):
        return ds_read("ds_read_b128", a(xf(j, st, qb), 4), v(V_RX + j % 3), qb * 2048 + st * 512)

    stamp(pre, 1)
    setup, order1 = q_stage_ops(1)
    pre += setup
    for m0, so, dma in order1[:7]:
        pre += [m0, so, dma]
    pre += [waitvm(lambda t: t == ("q", -1))]
    stamp(pre, 4, group="s")
    pre += [barrier()]
    stamp(pre, 5, group="s")
    stamp(pre, 2)
    for i, gg in enumerate((0, 30, 61, 63, 80 + 61, 80 + 63)):
        st = []
        stamp(st, 6 + i, group="s")
        G.put_seq(gg, *st)
    G.put(14, waitvm(lambda t: t == ("q", 0)), barrier())
    for i, (m0, so, dma) in enumerate(order1[11:]):
        G.put(2 * i, m0, so)
        G.put(2 * i + 1, dma)

    BAR = 58
    pre += [b_read(0, 0, 0)] + a_reads(0, 0, 0) + [b_read(0, 0, qb) for qb in range(1, 5)]
    for T in (1, 2, 3, 4):
        pre += a_reads(0, 0, T)
    for m0, so, dma in order1[7:11]:
        pre += [m0, so, dma]
    for f in range(5, 16):
        G.put(5 * (f - 5), *a_reads(0, f >> 3, f & 7))
    for qb in range(5):
        G.place(b_read(0, 1, qb), 12 + 5 * qb, 14 + 5 * qb)
    for j in range(1, 16):
        for T in range(8):
            for st in range(2):
                G.put(80 * j + 10 * (T - 2) + st, *a_reads(j, st ^ (T & 1), T))
        g = 80 * (j - 1) + BAR + 1
        for qb in range(5):
            for i in range(2):
                g = G.place(b_read(j, (i + qb) & 1, qb), g, g + 4) + (1 if i and not CFG["dense"] else 0)
        assert g < 80 * j - 2
    for j in range(16):
        g = 80 * j + BAR
        if j < 15:
            G.put(g, waitlds(), waitvm(lambda t, j=j: t in (("q", j + 1), ("clr", 0))), barrier())
        else:
            G.put(g, waitlds(), waitvm(lambda t: t == ("k", 0)), barrier())
        if j in (2, 12):
            st = []
            stamp(st, 1 + (j == 12), group="z")
            G.put(g, *st)
        QS = [0, 1, 2, 3, 5, 7, 8, 9, 10, 12, 15]
        if j in QS:
            st = []
            stamp(st, 1 + QS.index(j), group="q")
            G.put(g, *st)
    global KV
    KV = KVStream()
    park = dict(map(int, x.split(":")) for x in CFG["stash"].split(",") if x)
    g, last_miss, prev = 8, -1000, 3
    for j in range(2, 16):
        setup, order = q_stage_ops(j)
        miss = j % CFG["qrot"] == 0
        g = max(g, 80 * (j - 3) + BAR + 3 + len(setup))
        seq = [(([m0, so]), dma, miss) for m0, so, dma in order]
        seq[0] = (setup + seq[0][0], seq[0][1], miss)
        seq += [KV.next_parked() + (True,) for _ in range(park.get(j, 0))]
        if j in ints(CFG["wo_warm"]):
            i = ints(CFG["wo_warm"]).index(j)
            seq += [([salu("s_add_u32", s(S_KVO), s(S_WARM), i * warm_lanes() * 512)],
                     buf_load("buffer_load_dword", v(V_TCH + 1), v(V_T + 2), s(52, 4), s(S_KVO), 0, tag=("t", j)), True)]
        for i, (sc, op, is_miss) in enumerate(seq):
            prev = G.with_scalars(sc, op, g, max(prev, 80 * (j - 3) + BAR - 4))
            if i == 12:
                margin = 80 * (j - 1) + BAR - g
                print(f"; stage {j}: last load at gap {g}, {margin} gaps before it is needed", file=sys.stderr)
            if is_miss:
                last_miss = g
            g += CFG["slow"] if g - last_miss < CFG["lat"] else CFG["fast"]
    q_loads_end = max(g, prev + 4)
    G.put_seq(80 * 13 + BAR - 2, *touch_code("L_att", "L_out"))
    assert not KV.parked
    n, g0 = CFG["kv_q"], max(80 * 13 + BAR + 4, q_loads_end)
    first = min(n, CFG["kv_first"])
    pos = [g0 + 4 * i for i in range(first)]
    pos += [pos[-1] + (1276 - pos[-1]) * (i + 1) / (n - first) for i in range(n - first)]
    KV.place(G, pos, lambda c, isv: 80 * (13 if c == 0 else 14 if c < 3 else 15) + BAR + 3, CFG["cap_early"])
    return pre + G.flatten()


def s_t(kt, qb):
    return V_S + (kt * 5 + qb) * 4


def k_reads(c, f):
    kt, u = divmod(f, 4)
    return [ds_read("ds_read_b64", a(A_KF + 4 * f + 2 * jj, 2), v(V_RK + jj), kt * 4096 + u * 256) for jj in range(2)]


def v_reads(c, T):
    r = V_VF + 4 * (T % 4)
    return [ds_read("ds_read_b64_tr_b16", v(r + 2 * kt, 2), v(V_RV + (T & 1)), kt * 4096 + (T >> 1) * 256)
            for kt in range(2)]


def ring_step(reg, c_next):
    if (c_next + 2) % 5 == 0:
        return valu("v_subrev_u32", v(reg), 4 * 32768, v(reg))
    return valu("v_add_u32", v(reg), 32768, v(reg))


def x_mfmas(c):
    out = []
    for kt in range(2):
        for qb in range(5):
            d = v(s_t(kt, qb), 4)
            for i in range(4):
                u = i if qb % 2 == 0 else 3 - i
                cc = d if i else (0 if c == 0 else v(V_NM + 4 * qb, 4))
                out.append(mfma(d, a(A_KF + 4 * (4 * kt + u), 4), v(V_Q + (qb * 4 + u) * 4, 4), cc))
    return out


def p_reg(c, qb):
    return V_P + 20 * (c & 1) + 4 * qb


def y_mfmas(c):
    out = []
    for qb in range(5):
        d = a(A_L + 4 * qb, 4)
        out.append(mfma(d, a(A_ONE, 4), v(p_reg(c, qb), 4), d if c else 0))
    for T in range(8):
        for qq in range(5):
            qb = qq if T % 2 == 0 else 4 - qq
            d = a(A_O + (T * 5 + qb) * 4, 4)
            out.append(mfma(d, v(V_VF + 4 * (T % 4), 4), v(p_reg(c, qb), 4), d if c else 0))
    return out


def softmax_ops(c, kt):
    out = []
    for qb in range(5):
        r = s_t(kt, qb)
        ex = [valu("v_exp_f32", v(r + i), v(r + i)) for i in range(4)]
        cv = [valu("v_cvt_pk_bf16_f32", v(p_reg(c, qb) + 2 * kt + h), v(r + 2 * h), v(r + 2 * h + 1)) for h in range(2)]
        out.append((ex, cv))
    return out


def k1_convert_q():
    c = [salu("s_mov_b32", s(56), hex(SCALE)), salu("s_mov_b32", s(57), hex(SCALE))]
    for qb in range(5):
        for u in range(4):
            for h in range(2):
                r = V_ACC + (qb * 8 + 2 * u + h) * 4
                c += [valu("v_pk_mul_f32", v(r + 2 * i, 2), v(r + 2 * i, 2), s(56, 2)) for i in range(2)]
            for h in range(2):
                r = V_ACC + (qb * 8 + 2 * u + h) * 4
                c += [valu("v_cvt_pk_bf16_f32", v(V_Q + (qb * 4 + u) * 4 + 2 * h + i), v(r + 2 * i), v(r + 2 * i + 1))
                      for i in range(2)]
    return c


RL = 244
L_LIMIT = 0x4b800000


def row_max_finish():
    c = []
    for op in ("v_permlane32_swap_b32", "v_permlane16_swap_b32"):
        c += [valu("v_mov_b32", v(V_NM + 4 * qb + 1), v(V_NM + 4 * qb)) for qb in range(5)]
        c += [perm(op, v(V_NM + 4 * qb), v(V_NM + 4 * qb + 1)) for qb in range(5)]
        c += [valu("v_max_f32", v(V_NM + 4 * qb), v(V_NM + 4 * qb), v(V_NM + 4 * qb + 1)) for qb in range(5)]
    for qb in range(5):
        m = V_NM + 4 * qb
        c += [valu("v_sub_f32", v(m + i), 0, v(m)) for i in (3, 2, 1, 0)]
    return c


def read_l():
    return [valu("v_accvgpr_read_b32", v(RL + 2 * qb), a(A_L + 4 * qb)) for qb in range(5)]


def exact_softmax_fallback():
    DK, RK, RV, FR = V_P + 20, V_P + 24, V_P + 26, V_KF
    S_C, S_PRIV = S_KVO, S_T0
    c = [label("L_exact"), raw("s_waitcnt vmcnt(0) lgkmcnt(0)"), salu("s_lshl_b32", s(S_PRIV), s(S_W), 14)]
    c += [valu("v_and_b32", v(DK + i), "0xffffefff", v(V_DK + i)) for i in range(4)]
    for dst, src, off in ((RK, V_RK, 0), (RV, V_RV, 8192)):
        for i in range(2):
            c += [valu("v_and_b32", v(dst + i), "0xfff", v(src + i)), valu("v_add_u32", v(dst + i), off, v(dst + i)),
                  valu("v_add_u32", v(dst + i), s(S_PRIV), v(dst + i))]

    def load(isv):
        out = []
        for kt in range(2):
            out += [salu("s_add_u32", "m0", s(S_PRIV), isv * 8192 + kt * 4096),
                    salu("s_add_u32", s(S_T1), s(S_C), kt * 4096)]
            out += [buf_dma(v(DK + (rq if not isv else 2 * (rq & 1))), s(S_V if isv else S_K, 4), s(S_T1), rq * 1024)
                    for rq in range(4)]
        return out

    def scores(cinit):
        out = []
        for f in range(8):
            kt, u = divmod(f, 4)
            out += [ds_read("ds_read_b64", v(FR + 4 * f + 2 * jj, 2), v(RK + jj), kt * 4096 + u * 256)
                    for jj in range(2)]
            if f % 2:
                out += [waitlds()]
        for f in range(8):
            kt, u = divmod(f, 4)
            for qb in range(5):
                d = v(s_t(kt, qb), 4)
                out += [mfma(d, v(FR + 4 * f, 4), v(V_Q + (qb * 4 + u) * 4, 4), d if u else cinit(qb))]
        return out

    def loop(name, body):
        return [salu("s_mov_b32", s(S_C), 0), label(name)] + body + \
               [nop(8), salu("s_add_u32", s(S_C), s(S_C), 8192), salu("s_cmp_lt_u32", s(S_C), 131072),
                raw(f"s_cbranch_scc1 {name}", "branch", uses={"scc"})]

    c += [valu("v_mov_b32", v(V_NM + 4 * qb), "0xff800000") for qb in range(5)]
    body = load(0) + [wait(vm=0)] + scores(lambda qb: 0)
    for qb in range(5):
        m = v(V_NM + 4 * qb)
        for kt in range(2):
            r = s_t(kt, qb)
            body += [valu("v_max3_f32", m, m, v(r), v(r + 1)), valu("v_max3_f32", m, m, v(r + 2), v(r + 3))]
    c += loop("L_exact_max", body) + row_max_finish()
    c += [valu("v_accvgpr_write_b32", a(i), 0) for i in range(A_ONE)]
    body = load(0) + load(1) + [wait(vm=0)] + scores(lambda qb: v(V_NM + 4 * qb, 4))
    for kt in range(2):
        for ex, cv in softmax_ops(0, kt):
            body += ex + cv
    for T in range(8):
        body += [ds_read("ds_read_b64_tr_b16", v(FR + 4 * T + 2 * kt, 2), v(RV + (T & 1)), kt * 4096 + (T >> 1) * 256)
                 for kt in range(2)]
        if T % 2:
            body += [waitlds()]
    for qb in range(5):
        d = a(A_L + 4 * qb, 4)
        body += [mfma(d, a(A_ONE, 4), v(p_reg(0, qb), 4), d)]
    for T in range(8):
        for qb in range(5):
            d = a(A_O + (T * 5 + qb) * 4, 4)
            body += [mfma(d, v(FR + 4 * T, 4), v(p_reg(0, qb), 4), d)]
    c += loop("L_exact_pv", body) + read_l() + [raw("s_branch L_checked", "branch")]
    return c


def k1_attention():
    c = []
    conv = k1_convert_q()
    head = []
    for f in range(4):
        head += k_reads(0, f)

    def weave(code, n):
        step = len(code) // (n + 1) if n else 0
        for i in range(n):
            if KV.peek()[0] >= 5:
                break
            sc, d = KV.next()
            sc = [y for x in sc for y in (x if isinstance(x, list) else [x])]
            if CFG["kv_cap"] and CFG["cap_early"]:
                sc = sc + even_cap()
            at = (i + 1) * step + 3 * i
            code[at:at] = sc + [d]

    weave(conv, CFG["kv_c"])
    conv[len(conv) - 30:len(conv) - 30] = head
    dumps = [x for (c_, isv) in KV.reg if c_ < 5 for x in KV.dump(c_, isv)]
    at = [4 + i * (len(conv) - 8) // max(len(dumps), 1) for i in range(len(dumps))]
    for k, x in reversed(list(zip(at, dumps))):
        conv[k:k] = x if isinstance(x, list) else [x]
    c += [label("L_att")] + conv
    stamp(c, 3)
    G = Gaps(x_mfmas(0))
    for f in range(4, 8):
        G.put(3 * (f - 4), *k_reads(0, f))
    G.put(26, ring_step(V_RK, 1), ring_step(V_RK + 1, 1))
    nx = CFG["kv_x"] // 2
    nx = min(nx, sum(1 for x in KV.dma if x[0] < 5))
    KV.place(G, [7 + 30 * i / max(nx, 1) for i in range(nx)], lambda c, isv: 0, CFG["cap_early"])
    c += G.flatten()
    T = V_T
    for qb in range(5):
        r0, r1, m = s_t(0, qb), s_t(1, qb), V_NM + 4 * qb
        c += [valu("v_max3_f32", v(m), v(r0), v(r0 + 1), v(r0 + 2)),
              valu("v_max3_f32", v(m + 1), v(r0 + 3), v(r1), v(r1 + 1)),
              valu("v_max3_f32", v(m), v(m), v(r1 + 2), v(r1 + 3)),
              valu("v_max_f32", v(m), v(m), v(m + 1))]
    c += row_max_finish()
    c += [waitvm(lambda t: t in (("k", 1), ("v", 0))), waitlds(), barrier()]
    for f in range(4):
        c += k_reads(1, f)
    sm = []
    for kt in range(2):
        for qb in range(5):
            r = s_t(kt, qb)
            sm += [valu("v_add_f32", v(r + i), v(V_NM + 4 * qb), v(r + i)) for i in range(4)]
    for kt in range(2):
        for ex, cv in softmax_ops(0, kt):
            sm += ex
        for ex, cv in softmax_ops(0, kt):
            sm += cv
    weave(sm, CFG["kv_x"] - nx)
    assert KV.peek() >= (0, 0)
    c += sm
    stamp(c, 4)
    stamp(c, 1, group="a")
    mf = []
    start = []
    for p in range(16):
        start.append(len(mf))
        if p < 15:
            mf += x_mfmas(p + 1)
        mf += y_mfmas(p)
    G = Gaps(mf)
    ypos = [start[p] + (40 if p < 15 else 0) for p in range(16)]
    for p in range(16):
        g0, y0 = start[p], ypos[p]
        if p < 15:
            for f in range(4, 8):
                G.put(g0 + 4 * (f - 4), *k_reads(p + 1, f))
        for T in range(8):
            g = y0 - 10 + 5 * T
            if p == 15 and T < 2:
                continue
            G.put(g, *v_reads(p, T))
        if p < 15:
            bar = y0 + 29
            need = [("k", p + 2), ("v", p + 1)]
            G.put(bar, waitlds(), waitvm(lambda t, need=need: t in need), barrier())
            if p in (2, 12):
                st = []
                stamp(st, 3 + (p == 12), group="z")
                G.put(bar, *st)
            AS = [0, 1, 2, 4, 6, 8, 10, 12, 13, 14]
            if p in AS:
                st = []
                stamp(st, 2 + AS.index(p), group="a")
                G.put(bar, *st)
            if p < 14:
                G.put(g0 + 22, ring_step(V_RK, p + 2))
                G.put(g0 + 23, ring_step(V_RK + 1, p + 2))
                for f in range(4):
                    G.put(bar + 1 + 3 * f, *k_reads(p + 2, f))
            G.put(y0 + 27, ring_step(V_RV, p + 1))
            G.put(y0 + 28, ring_step(V_RV + 1, p + 1))
            if p == 14:
                G.put(bar + 6, *v_reads(15, 0))
                G.put(bar + 11, *v_reads(15, 1))
    n = KV.left()

    def free_from(c, isv):
        p = c - 5 if isv else c - 6
        return ypos[p] + 29 + 3 if p >= 0 else 2

    pos = [3 + (CFG["kv_end"] - 3) * i / (n - 1) for i in range(n)]
    if CFG["cluster"]:
        lead = [i - x[2] if i >= x[2] else 0 for i, x in enumerate(KV.dma)]
        pos = [pos[k] for k in lead]
    kv_last = KV.place(G, pos, free_from)
    sc, vc = p2_setup()
    g = start[2]
    for o in sc:
        while G.s[g]:
            g += 1
        G.put(g, *(o if isinstance(o, list) else [o]))
    g = start[2]
    for o in vc:
        g = G.place(o, g, g + 20) + 1

    g = kv_last + 6
    step = max(4, min(8, (len(mf) - 6 - g) // 16))
    for m, p in enumerate((10, 11, 11, 12)):
        for sc, op in p2_wo(m):
            g = max(g, ypos[p] + 29 + 2 + len(sc))
            for q, o in enumerate(sc):
                G.put(g - 3 + (3 * q) // len(sc), o)
            g = G.place(op, g, g + 2) + step
    for c_, isv in KV.reg:
        if c_ >= 5:
            g = free_from(c_, isv) + (30 if isv else 0)
            for x in KV.dump(c_, isv):
                if isinstance(x, list):
                    while G.load(g) > 4:
                        g += 1
                    G.put_seq(g, *x)
                    g += 2
                else:
                    g = G.place(x, g, g + 6) + 1
    G.put(ypos[1] + 1, valu("v_mov_b32", v(V_T + 2), 1))
    G.put(ypos[1] + 2, salu("s_lshl_b32", s(S_T0), s(S_W), 12))
    G.put(ypos[1] + 3, Ins(f"buffer_atomic_add {v(V_T + 2)}, {v(V_ONE)}, {s(S_DBG, 4)}, {s(S_T0)} offen sc1", "vm_st",
                           (), regs_of(v(V_T + 2)) | regs_of(v(V_ONE)) | regs_of(s(S_DBG, 4)) | {f"s{S_T0}"},
                           tag=("cnt", 0)))
    zero, lane4, pf, pc = v(V2_T + 1), v(V2_T + 5), v(V2_T + 2), v(V2_T + 4)
    cnt_load = buf_load("buffer_load_dword", pc, zero, s(S_DBG, 4), 0, 0, "sc1")
    id_load = buf_load("buffer_load_dword", pf, lane4, s(S_FLAG, 4), s(S2_FL), 0, "sc1")
    g = start[9] + 1
    for o in (valu("v_mov_b32", zero, 0), valu("v_and_b32", lane4, 31, v(0)), valu("v_lshlrev_b32", lane4, 2, lane4),
              cnt_load):
        g = G.place(o, g, g + 10) + 1
    G.put_seq(start[11] + 2, *check("L_cnt", cnt_load, lambda: [valu("v_readfirstlane_b32", s(S_POLL), pc),
                                                                 salu("s_cmp_ge_u32", s(S_POLL), 256)]), id_load)
    g = G.place(valu("v_and_b32", pf, 15, pf), start[13] + 2, start[13] + 12)
    G.place(valu("v_cmp_eq_u32", s(54, 2), s(S_XCC), pf), g + 1, g + 10)
    ops = []
    for p in range(15):
        g0, nxt = start[p], start[p + 1]
        for kt in range(2):
            for qb, (ex, cv) in enumerate(softmax_ops(p + 1, kt)):
                done = g0 + 20 * kt + 4 * qb + 3
                hi = ypos[p + 1] + qb - 2
                if p < 14:
                    hi = min(hi, nxt + 20 * kt + 4 * qb - 1)
                base = len(ops)
                for i, e in enumerate(ex):
                    ops.append(dict(ins=e, lo=done + 4, hi=hi - 1 - (3 - i)))
                for h, x in enumerate(cv):
                    ops.append(dict(ins=x, lo=done + 4, hi=hi, deps=[base + 2 * h, base + 2 * h + 1]))
    G.put_seq(ypos[9] + 31, *touch_code("L_out", "L_end"))
    over = G.schedule(ops)
    print(f"; attention: {over} softmax ops placed in full gaps", file=sys.stderr)
    c += G.flatten()
    stamp(c, 5)
    c += [label("L_out"), barrier()]
    if CFG["tlb"]:
        c += [smem("s_load_dword", s(59), s(S_OUTP, 2), 0)]
    c += read_l() + [valu("v_max3_f32", v(RL + 1), v(RL), v(RL + 2), v(RL + 4)),
                     valu("v_max3_f32", v(RL + 1), v(RL + 1), v(RL + 6), v(RL + 8)),
                     valu("v_cmp_lt_f32", "vcc", hex(0 if CFG.get("force_exact") else 0x7f800000 if CFG.get("abl") else L_LIMIT), v(RL + 1)),
                     raw("s_cbranch_vccnz L_exact", "branch", uses={"vcc"}), label("L_checked")]
    OUTLINE.extend(exact_softmax_fallback())
    c += [salu("s_cmp_eq_u64", s(54, 2), -1), raw("s_cbranch_scc0 L_remote", "branch", uses={"scc"}),
          Ins("; local", "mark", tag="begin")]
    for qb in range(5):
        c += [valu("v_rcp_f32", v(RL + 2 * qb), v(RL + 2 * qb))]
    B0 = V_S
    n = 0
    for u in range(4):
        c += [salu("s_add_u32", s(S_T1), s(S_OFF), u * 10240)]
        for qb in range(5):
            tb = B0 + 12 * (n % 8)
            n += 1
            for h in range(2):
                c += [valu("v_accvgpr_read_b32", v(tb + 4 * h + i), a(A_O + ((2 * u + h) * 5 + qb) * 4 + i))
                      for i in range(4)]
            c += [valu("v_pk_mul_f32", v(tb + 2 * i, 2), v(tb + 2 * i, 2), v(RL + 2 * qb, 2), mods="op_sel_hi:[1,0]")
                  for i in range(4)]
            c += [valu("v_cvt_pk_bf16_f32", v(tb + 8 + i), v(tb + 2 * i), v(tb + 2 * i + 1)) for i in range(4)]
            if qb < 4:
                c += [buf_store("buffer_store_dwordx4", v(tb + 8, 4), v(V_ST), s(S_O, 4), s(S_T1), qb * 1024,
                                CFG["o_st_flags"], tag=("ost", 0))]
            else:
                c += [salu("s_add_u32", s(S_KVO), s(S_T1), 4096),
                      buf_store("buffer_store_dwordx4", v(tb + 8, 4), v(V_ST), s(S_O, 4), s(S_KVO), 0,
                                CFG["o_st_flags"], tag=("ost", 0))]
    stamp(c, 6)
    return c


S2_WO, S2_OUT, S2_PART = 8, 4, 12
S2_ROT, S2_KO, S2_KW, S2_T0, S2_T1, S2_LO, S2_KB, S_SPIN, S_POLL = 25, 26, 27, 28, 29, 30, 31, 67, 101
S2_FL, S2_PLD = 48, 49
V2_DW, V2_DO, V2_RW, V2_RO, V2_ST, V2_PX, V2_T = 1, 5, 7, 9, 11, 12, 22
A2_OF, A2_WF = 0, 80
V2_ACC, V2_IN = 96, 176
WO_SLOT = [98304, 114688, 131072, 147456, 81920]
V2_RW2 = 216


def p2_kidx(m):
    S2_HL4 = 58
    if CFG["own_first"]:
        return [salu("s_add_u32", s(S2_T0), s(S2_ROT), m & 3), salu("s_and_b32", s(S2_T0), s(S2_T0), 3),
                salu("s_add_u32", s(S2_T0), s(S2_T0), s(S2_HL4)),
                salu("s_add_u32", s(S2_T0), s(S2_T0), m & ~3), salu("s_and_b32", s(S2_T0), s(S2_T0), 31),
                salu("s_lshl1_add_u32", s(S2_T0), s(S2_T0), s(S2_KB))]
    return rot_index(s(S2_T0), s(S2_ROT), m, CFG["orot"]) + \
        [salu("s_lshl_b32", s(S2_T0), s(S2_T0), 1), salu("s_add_u32", s(S2_T0), s(S2_T0), s(S2_KB))]


def p2_wo(m):
    sc = p2_kidx(m) + [salu("s_lshl_b32", s(S2_KW), s(S2_T0), 16),
                       salu("s_add_u32", "m0", s(S_LK), WO_SLOT[m % CFG["wo_slots"]])]
    return [(sc if rq == 0 else [], buf_dma(v(V2_DW + rq), s(S2_WO, 4), s(S2_KW), rq * 1024, CFG["wo_flags"],
                                            tag=("w", m))) for rq in range(4)]


def p2_o(m):
    sc = p2_kidx(m) + [salu("s_mul_i32", s(S2_KO), s(S2_T0), 10240),
                       salu("s_add_u32", "m0", s(S2_LO), (m % 4) * 20480)]
    out = [(sc if i == 0 else [], buf_dma(v(V2_DO), s(S_O, 4), s(S2_KO), i * 1024, CFG["o_ld_flags"], tag=("w", m)))
           for i in range(4)]
    out.append(([salu("s_add_u32", "m0", s(S2_LO), (m % 4) * 20480 + 4096)],
                buf_dma(v(V2_DO + 1), s(S_O, 4), s(S2_KO), 0, CFG["o_ld_flags"], tag=("w", m))))
    return out


def flat(pairs):
    return [x for sc, op in pairs for x in sc + [op]]


def p2_setup():
    sc = [salu("s_and_b32", s(56), s(S_HP), 7), salu("s_and_b32", s(57), s(S_B), 3)]
    if CFG["orot"] == 8:
        sc += [salu("s_lshl_b32", s(57), s(57), 1)]
    sc += [salu("s_add_u32", s(S2_ROT), s(56), s(57)), salu("s_lshl_b32", s(58), s(56), 2),
           salu("s_lshr_b32", s(S2_KB), s(S_HP), 3), salu("s_lshl_b32", s(S2_KB), s(S2_KB), 6),
           salu("s_mul_i32", s(S2_LO), s(S_W), 5120),
           salu("s_and_b32", s(S2_FL), s(S_MYFLAG), "0xffffff80"),
           salu("s_lshl_b32", s(56), s(56), 8)]
    sc.append([salu("s_add_u32", s(S_WOP), s(S_WOP), s(56)), salu("s_addc_u32", s(S_WOP + 1), s(S_WOP + 1), 0)])
    sc += [salu("s_sub_u32", s(57), 8388608, s(56))]
    srd(sc, S2_WO, s(S_WOP), s(S_WOP + 1), s(57))
    sc += [salu("s_mul_i32", s(57), s(S_B), 655360), salu("s_add_u32", s(56), s(56), s(57)),
           salu("s_lshl_b32", s(57), s(S_BR), 11), salu("s_add_u32", s(56), s(56), s(57))]
    sc.append([salu("s_add_u32", s(S_OUTP), s(S_OUTP), s(56)), salu("s_addc_u32", s(S_OUTP + 1), s(S_OUTP + 1), 0)])
    sc += [salu("s_sub_u32", s(57), 5242880, s(56))]
    srd(sc, S2_OUT, s(S_OUTP), s(S_OUTP + 1), s(57))
    sc += [salu("s_mul_i32", s(56), s(S_TILE), 40960), salu("s_add_u32", s(56), s(56), hex(PART_OFF))]
    sc.append([salu("s_add_u32", s(50), s(S_WS), s(56)), salu("s_addc_u32", s(51), s(S_WS + 1), 0)])
    sc.append([salu("s_bitcmp1_b32", s(S_HP), 3), salu("s_cselect_b32", s(S2_PLD), 0, "0x100000")])
    L, W, T0, T1 = v(V_T), v(V_T + 1), v(V_T + 4), v(V_T + 5)
    vc = [valu("v_lshrrev_b32", T0, 4, L), valu("v_lshlrev_b32", T0, 6, T0), valu("v_bfe_u32", T1, L, 2, 2),
          valu("v_lshl_add_u32", T0, T1, 11, T0), valu("v_and_b32", T1, 3, L), valu("v_lshl_add_u32", T0, T1, 4, T0),
          valu("v_lshl_add_u32", T0, W, 15, T0), valu("v_xor_b32", T1, 32, T0)]
    vc += [valu("v_add_u32", v(V2_DW + rq), 4 * rq * 2048 - rq * 1024, T1 if rq & 1 else T0) for rq in range(4)]
    vc += [valu("v_mul_u32_u24", T0, 5120, W), valu("v_lshl_add_u32", v(V2_DO), L, 4, T0),
           valu("v_add_u32", v(V2_DO + 1), 4096, v(V2_DO))]
    vc += [valu("v_lshrrev_b32", T0, 4, L), valu("v_lshlrev_b32", T0, 10, T0),
           valu("v_bfe_u32", T1, L, 2, 2), valu("v_lshl_add_u32", T0, T1, 6, T0),
           valu("v_bfe_u32", T1, L, 4, 1), valu("v_lshl_add_u32", T0, T1, 5, T0),
           valu("v_and_b32", T1, 3, L), valu("v_lshl_add_u32", T0, T1, 3, T0),
           valu("v_lshrrev_b32", T1, 1, W), valu("v_lshl_add_u32", T0, T1, 9, T0),
           valu("v_add_u32", v(V2_RW), 81920, T0), valu("v_xor_b32", v(V2_RW + 1), 32, v(V2_RW))]
    vc += [valu("v_and_b32", T0, 1, W), valu("v_mul_u32_u24", T0, 5120, T0),
           valu("v_lshl_add_u32", v(V2_RO), L, 4, T0), valu("v_add_u32", v(V2_RO + 1), 40960, v(V2_RO)),
           valu("v_and_b32", T0, 1, W), valu("v_mul_u32_u24", T0, 80, T0), valu("v_and_b32", T1, 15, L),
           valu("v_add_u32", T0, T0, T1), valu("v_lshlrev_b32", T0, 12, T0), valu("v_lshrrev_b32", T1, 4, L),
           valu("v_lshl_add_u32", T0, T1, 4, T0), valu("v_lshrrev_b32", T1, 1, W),
           valu("v_lshl_add_u32", v(V2_ST), T1, 7, T0),
           valu("v_mul_u32_u24", T0, 10240, W), valu("v_lshl_add_u32", v(V2_PX), L, 4, T0)]
    return sc, vc


A2_SEL = 248


def p2_selectors():
    L, T0, T1, T2 = v(V_T), v(V_T + 2), v(V_T + 3), v(V_T + 4)
    c = [valu("v_and_b32", T0, 1, L), valu("v_lshlrev_b32", T0, 4, T0), valu("v_mov_b32", T1, "0x3f80"),
         valu("v_lshlrev_b32", T0, T0, T1),
         valu("v_bfe_u32", T1, L, 3, 1), valu("v_lshrrev_b32", T2, 4, L), valu("v_sub_u32", T1, T2, T1),
         valu("v_bfe_u32", T2, L, 1, 2), valu("v_lshl_add_u32", T1, T1, 2, T2)]
    for h in range(2):
        for d in range(4):
            c += [valu("v_cmp_eq_u32", "vcc", 8 * h + d, T1), valu("v_cndmask_b32", T2, 0, T0),
                  valu("v_accvgpr_write_b32", a(A2_SEL + 4 * h + d), T2)]
    return c


def check(name, load, test, first=()):
    again = Ins(load.text, "other", uses=load.uses)
    OUTLINE.extend([label(f"{name}_slow")] + list(first) + [salu("s_mov_b32", s(S_SPIN), 200000), label(name), again,
                   raw("s_waitcnt vmcnt(0)")] + test() +
                   [raw(f"s_cbranch_scc1 {name}_ok", "branch"), raw("s_sleep 2"),
                    salu("s_sub_u32", s(S_SPIN), s(S_SPIN), 1), raw(f"s_cbranch_scc0 {name}", "branch"),
                    raw(f"s_branch {name}_ok", "branch")])
    return test() + [raw(f"s_cbranch_scc0 {name}_slow", "xbranch", uses={"scc"}), Ins(f"{name}_ok:", "xlabel")]


def phase2():
    one, zero, lane4, pf = v(V2_T + 7), v(V2_T + 1), v(V2_T + 5), v(V2_T + 2)
    flag_load = buf_load("buffer_load_dword", pf, lane4, s(S_FLAG, 4), s(S2_FL), 0, "sc1")
    part_load = buf_load("buffer_load_dword", pf, zero, s(S_FLAG, 4), s(S_PFLAG), 0, "sc1")
    flag_test = lambda: [valu("v_cmp_lt_u32", s(52, 2), s(S2_T1), pf), salu("s_cmp_eq_u64", s(52, 2), -1)]
    part_test = lambda: [valu("v_readfirstlane_b32", s(S_POLL), pf), salu("s_or_b32", s(S_POLL), s(S_POLL), s(S2_PLD)),
                         salu("s_cmp_ge_u32", s(S_POLL), 1)]
    c = [salu("s_or_b32", s(S2_T1), s(S_XCC), "0x100"), valu("v_mov_b32", one, s(S2_T1)),
         salu("s_movk_i32", s(S2_T1), "0xff")]
    srd(c, S2_PART, s(50), s(51), 40960)
    c += [waitvm(lambda t: t == ("ost", 0)),
          buf_store("buffer_store_dword", one, v(V_ONE), s(S_FLAG, 4), s(S_MYFLAG), 0, CFG["o_st_flags"],
                    tag=("flag", 0)),
          Ins("; local end", "mark", tag="end"), label("L_published")]
    stamp(c, 7)
    if CFG["own_first"]:
        c += [barrier()]
    else:
        c += [flag_load] + check("L_flag", flag_load, flag_test)
    stamp(c, 8)
    c += [x for m in range(CFG["o_pre"]) for x in flat(p2_o(m))]
    if CFG["wo_slots"] == 5:
        c += flat(p2_wo(4))
    c += [valu("v_add_u32", v(V2_RW2 + h), 131072 - 81920, v(V2_RW + h)) for h in range(2)]

    acc = lambda T, qb: V2_ACC + (T * 5 + qb) * 4
    wf = lambda m, st, T: A2_WF + 4 * ((8 * m + 2 * T + st) % 6)
    of = lambda m, st, qb: A2_OF + 20 * (2 * (m & 1) + st) + 4 * qb
    mf = []
    for m in range(32):
        for T in range(4):
            for qq in range(5):
                qb = qq if T % 2 == 0 else 4 - qq
                d = v(acc(T, qb), 4)
                for i in range(2):
                    st = (i + qq + T) & 1
                    mf.append(mfma(d, a(wf(m, st, T), 4), a(of(m, st, qb), 4), d if (m or i) else 0))
    sel = lambda pair: [mfma(v(acc(2 * pair + h, qb), 4), a(A2_SEL + 4 * h, 4), v(V2_IN + 4 * (pair * 5 + qb), 4),
                             v(acc(2 * pair + h, qb), 4)) for qb in range(5) for h in range(2)]
    mf = mf[:-20] + sel(0) + mf[-20:] + sel(1)
    G = Gaps(mf)

    def w_reads(m, st, T):
        slot = WO_SLOT[m % CFG["wo_slots"]]
        base, off = (V2_RW2, slot - 131072) if slot >= 131072 else (V2_RW, slot - 81920)
        return [ds_read("ds_read_b64_tr_b16", a(wf(m, st, T) + 2 * kt, 2), v(base + (T & 1)),
                        off + st * 8192 + kt * 4096 + (T >> 1) * 256) for kt in range(2)]

    def o_read(m, st, qb):
        return ds_read("ds_read_b128", a(of(m, st, qb), 4), v(V2_RO + ((m % 4) >> 1)),
                       (m & 1) * 20480 + st * 10240 + qb * 1024)

    BAR = 18
    c += [waitvm(lambda t: t == ("w", 0)), barrier()]
    c += [o_read(0, 0, 0)] + w_reads(0, 0, 0) + [o_read(0, 1, 0)] + w_reads(0, 1, 0)
    c += [o_read(0, (i + qb) & 1, qb) for qb in range(1, 5) for i in range(2)][:6] + [wait(lg=6)]
    c += [o_read(0, 0, 4), o_read(0, 1, 4)] + w_reads(0, 1, 1) + w_reads(0, 0, 1)
    for m in range(32):
        for T in range(4):
            for st in range(2):
                if m or T >= 2:
                    G.put(40 * m + 10 * (T - 2) + st, *w_reads(m, st ^ (T & 1), T))
        if m:
            g = 40 * (m - 1) + BAR + 1
            for qb in range(5):
                for i in range(2):
                    g = G.place(o_read(m, (i + qb) & 1, qb), g, g + 4) + (1 if i and not CFG["dense"] else 0)
            assert g < 40 * m - 2
    for m in range(31):
        G.put(40 * m + BAR, waitlds(), waitvm(lambda t, m=m: t == ("w", m + 1)), barrier())

    last = [0]

    def spread(pairs, g0, g1):
        for i, (sc, op) in enumerate(pairs):
            last[0] = G.with_scalars(sc, op, g0 + (g1 - g0) * i // max(len(pairs) - 1, 1), last[0])
        return last[0]

    if CFG["own_first"]:
        G.put(2, flag_load)
        G.put_seq(BAR - 2, *check("L_flag", flag_load, flag_test))
    lead = CFG["lead"]
    early = [x for m in range(CFG["o_pre"], 4) for x in p2_o(m)]
    spread(early[:5], 4, BAR - 3)
    wl = CFG["wo_slots"]
    for m in range(4, 32):
        g0 = 40 * (m - lead) + BAR + 4
        wo = p2_wo(m + wl - 4) if m + wl - 4 < 32 else []
        assert spread((early[5:] if m == 4 else []) + wo + p2_o(m), g0, g0 + 33) < g0 + 40
    pg = CFG["part_at"]
    G.put(pg - 50, part_load)
    G.put_seq(pg - 5, *check("L_part", part_load, part_test))
    pl = [([salu("s_add_u32", s(S2_T1), s(S2_PLD), (t // 4) * 4096)] if t % 4 == 0 else [],
           buf_load("buffer_load_dwordx4", v(V2_IN + 4 * t, 4), v(V2_PX), s(S2_PART, 4), s(S2_T1), (t % 4) * 1024,
                    "sc1", tag=("p", 0))) for t in range(10)]
    spread(pl, pg, min(pg + 45, 40 * 31 + 20))
    for k, m in enumerate((7, 23)):
        st = []
        stamp(st, 5 + k, group="z")
        G.put(40 * m + 39, *st)
    PS = [1, 3, 7, 11, 15, 19, 23, 27]
    for k, m in enumerate(PS):
        st = []
        stamp(st, 2 + k, group="p")
        G.put(40 * m + 39, *st)
    PK = 32
    role = [salu("s_bitcmp1_b32", s(S_HP), 3)]
    G.put(40 * 30 + 1, *role, *[salu("s_cselect_b32", s(S2_OUT + i), s(S2_OUT + i), s(S2_PART + i)) for i in range(3)])
    G.put(40 * 30 + 3, *role, salu("s_cselect_b64", "vcc", -1, 0))
    G.put(40 * 30 + 4, salu("s_movk_i32", s(52), 1024), salu("s_movk_i32", s(53), 5120))
    G.put(40 * 30 + 5, *role, salu("s_cselect_b32", s(52), 65536, s(52)), salu("s_cselect_b32", s(53), 64, s(53)))
    G.place(valu("v_cndmask_b32", v(V2_ST), v(V2_PX), v(V2_ST)), 40 * 30 + 6, 40 * 30 + 12)

    assert "sc1" in CFG["out_flags"]

    def tail(pair):
        out = []
        for qb in range(5):
            k = PK + 20 * pair + 4 * qb
            ops = [valu("v_cvt_pk_bf16_f32", v(k + 2 * h + i), v(acc(2 * pair + h, qb) + 2 * i),
                        v(acc(2 * pair + h, qb) + 2 * i + 1)) for h in range(2) for i in range(2)]
            out.append(ops)
        for op in ("v_permlane32_swap_b32", "v_permlane16_swap_b32"):
            out.append([perm(op, v(PK + 20 * pair + 4 * qb + i), v(PK + 20 * pair + 4 * qb + 2 + i))
                        for qb in range(5) for i in range(2)])
        for qb in range(5):
            off = salu("s_add_u32", s(S2_T0), s(S2_T0), s(52)) if qb else \
                salu("s_mov_b32", s(S2_T0), s(53) if pair else 0)
            out.append([off, buf_store("buffer_store_dwordx4", v(PK + 20 * pair + 4 * qb, 4), v(V2_ST),
                                       s(S2_OUT, 4), s(S2_T0), 0, CFG["out_flags"])])
        return [x for o in out for x in o]

    t0 = tail(0)
    g = len(mf) - 30 + 3
    while t0 and g < len(mf):
        n = 0
        while t0 and (n < 2 or not t0[0].cost):
            n += bool(t0[0].cost)
            G.put_seq(g, t0.pop(0))
        g += 1
    stamp(c, 1, group="p")
    c += G.flatten()
    stamp(c, 9)
    stamp(c, 10, group="p")
    c += t0 + tail(1)
    c += role + [raw("s_cbranch_scc1 L_done", "branch", uses={"scc"}), raw("s_waitcnt vmcnt(0)"),
                 raw(f"buffer_store_dword {one}, {v(V_ONE)}, {s(S_FLAG, 4)}, {s(S_PFLAG)} offen sc1")]
    c += [label("L_done")]
    stamp(c, 10)
    if CFG["stamps"]:
        c += [wait(vm=0)]
    stamp(c, 11)
    stamp(c, 11, group="p")
    if CFG.get("xcc"):
        c += [raw("s_getreg_b32 s81, hwreg(HW_REG_XCC_ID)", "salu", defs={"s81"}),
              salu("s_and_b32", s(81), s(81), 15), salu("s_add_u32", s(81), s(81), s(70))]
    return c


def kernel():
    OUTLINE.clear()
    c = [label("L_code0")]
    stamp(c, 0)
    c += k1_prologue_early()
    c += k1_qproj() + k1_attention() + phase2()
    if "probe" in CFG:
        c += [salu("s_cmp_lg_u32", s(2), 1), raw("s_cbranch_scc1 L_end", "branch"),
              salu("s_sub_u32", s(56), s(82 + CFG["probe"]), s(82)), salu("s_mul_i32", s(56), s(56), 10),
              salu("s_add_u32", s(56), s(56), s(93)), label("L_probe"),
              raw("s_memrealtime s[98:99]"), raw("s_waitcnt lgkmcnt(0)"), salu("s_sub_u32", s(57), s(98), s(56)),
              salu("s_cmp_lt_i32", s(57), 0), raw("s_cbranch_scc1 L_probe", "branch")]
    elif CFG.get("dbgstamps"):
        c += [salu("s_not_b32", s(56), s(82)), valu("v_mov_b32", v(2), s(56)),
              Ins(f"buffer_atomic_umax v2, {v(V_ONE)}, {s(S_DBG, 4)}, 0 offen offset:12 sc1", "vm_st", (), {"v2"})]
        for i in range(12):
            c += [valu("v_mov_b32", v(3 + i), s(82 + i)),
                  Ins(f"buffer_atomic_umax v{3 + i}, {v(V_ONE)}, {s(S_DBG, 4)}, 0 offen offset:{16 + 4 * i} sc1",
                      "vm_st", (), {f"v{3 + i}"})]
    else:
        store_stamps(c, 12, s(S_WS), s(S_WS + 1), 0x4000000, s(S_W))
    c += [label("L_end"), raw("s_endpgm")] + OUTLINE
    return c


def audit(code):
    phase, over, cnt, worst = "q", {}, {}, {}
    i = 0
    idx = [k for k, x in enumerate(code) if x.kind == "mfma"]
    for n, (k0, k1) in enumerate(zip(idx, idx[1:])):
        gap = [x for x in code[k0 + 1:k1] if x.kind not in ("label", "xlabel", "mark")]
        phase = "q" if n < 1280 else "att" if n < 2640 else "p2" if n < 3920 else "x"
        if len(gap) > 12:
            continue
        t = 4
        for x in gap:
            if x.cost:
                t = max(t, 8) + x.cost
            else:
                t += 4 * (x.tag if x.kind == "nop" else 1)
        if t > 16:
            over[phase] = over.get(phase, 0) + t - 16
            cnt[phase] = cnt.get(phase, 0) + 1
            key = (phase, tuple(x.kind for x in gap))
            worst[key] = worst.get(key, 0) + t - 16
    print("; overflow cycles", over, "gaps", cnt, file=sys.stderr)
    for k, x in sorted(worst.items(), key=lambda y: -y[1])[:24]:
        print(";   ", x, k, file=sys.stderr)


def finish(code, name):
    abl = CFG.get("abl", "")
    if abl:
        first = next(i for i, x in enumerate(code) if x.kind == "mfma")
        kinds = {"d": ("vm_dma", "vm_ld"), "r": ("ds_r",), "b": ("barrier",), "e": ("trans",)}
        drop = sum((kinds[k] for k in abl), ())
        last = next(i for i, x in enumerate(code) if x.text == "L_end:")
        keep = lambda x: x.tag in (("clr", 0), ("cnt", 0)) or "dword " in x.text
        code = [x for i, x in enumerate(code) if not (first < i < last and x.kind in drop and not keep(x))]
    import asmir
    asmir.AGE = CFG["age"]
    code = insert_waits(code)
    code, pad = fix_hazards(code)
    i0 = next(i for i, x in enumerate(code) if x.kind == "mark" and x.tag == "begin")
    i1 = next(i for i, x in enumerate(code) if x.kind == "mark" and x.tag == "end")
    remote = [Ins(x.text + (" sc1" if x.kind == "vm_st" else ""), x.kind) for x in code[i0 + 1:i1]]
    if CFG.get("force_remote"):
        code[i0] = raw("s_branch L_remote")
    code = [x for x in code if x.kind != "mark"] + [label("L_remote")] + remote + [raw("s_branch L_published")]
    masked = False
    for x in code:
        if x.text.startswith("s_mov_b64 exec"):
            masked = not x.text.endswith("-1")
        else:
            assert not masked or x.kind in ("ds_w", "wait", "nop"), x.text
    if CFG.get("audit"):
        audit(code)
    n = {k: sum(1 for i in code if i.kind == k) for k in ("mfma", "wait", "nop", "barrier")}
    print(f"; {name}: {len(code)} instrs, {n}, padded {pad} states", file=sys.stderr)
    return text(code)


DOC = """;
; Workgroup (branch, batch, head pair); wave (head, 80 query rows); v_mfma_f32_16x16x32_bf16 throughout.
;  4. Each workgroup accumulates a 160 x 128 output tile over its head group (half of K); head group 0 hands its
;
"""

KD = """.amdhsa_kernel {k}
  .amdhsa_next_free_vgpr 512
  .amdhsa_next_free_sgpr 102
  .amdhsa_accum_offset 256
  .amdhsa_group_segment_fixed_size 0
  .amdhsa_kernarg_size 104
  .amdhsa_user_sgpr_count 2
  .amdhsa_user_sgpr_kernarg_segment_ptr 1
  .amdhsa_system_sgpr_workgroup_id_x 1
.end_amdhsa_kernel
"""


def build(**cfg):
    CFG.update(cfg)
    ref = open(f"cdna_kernels/{NAME}.s.ref").read().splitlines()
    head = [l for l in ref if l.startswith(";") and "@launch" not in l and not l.startswith("; Override")
            and not l.startswith("; grid=ceil")]
    kernels = [(f"{NAME}_kernel", kernel())]
    out = "\n".join(head) + "\n; @launch grid=(256,1,1) block=(256,1,1) lds=163840\n"
    out += DOC + '.amdgcn_target "amdgcn-amd-amdhsa--gfx950"\n.text\n'
    for k, code in kernels:
        out += f".globl {k}\n.p2align 8\n.type {k},@function\n{k}:\n" + finish(code, k)
    out += '.section .rodata,"a"\n'
    for k, _ in kernels:
        out += ".p2align 6\n" + KD.format(k=k)
    return out


if __name__ == "__main__":
    cfg = {}
    path = f"cdna_kernels/{NAME}.s"
    for arg in sys.argv[1:]:
        if "=" in arg:
            k, val = arg.split("=", 1)
            cfg[k] = {"True": True, "False": False}.get(val, int(val) if val.isdigit() else val)
        else:
            path = arg
    open(path, "w").write(build(**cfg))
```

```python
import struct
import sys

sys.path.insert(0, "tools")
from asmir import *

NAME = "concat_heads__mha_block_cached__mha_block_cached__near_ridge"
SCALE = struct.unpack("<I", struct.pack("<f", 128 ** -0.5 * 1.4426950408889634))[0]

CFG = dict(
    kv_flags="nt",
    xw_flags="",
    wo_flags="",
    o_st_flags="",
    o_ld_flags="sc1",
    stamps=False,
    qrot=2,
    orot=8,
    touch=True,
    kv_q=16,
    kv_c=6,
    kv_x=6,
    kv_end=1160,
    stash="6:2,8:2,10:2,12:2",
    st_short="4", st_long="",
    slow=5, fast=6, lat=55, wo_end=1190,
    tlb=True, own_first=False, odd_only=True, vsum=False, dense=False, age=0, lead=4, wo_slots=4, o_pre=2, part_at=1190,
    wo_warm="",
    out_flags="sc1", cap_early=False, kv_first=4, cluster=False,
    kv_cap=0,
)
FLAG_OFF = 0x2000000
PFLAG = 0x2000
PART_OFF = 0x2800000
NEVER = 0x7ffffff0

v = lambda i, n=1: R("v", i, n)
a = lambda i, n=1: R("a", i, n)
s = lambda i, n=1: R("s", i, n)


def srd(code, base, lo, hi, size):
    code += [salu("s_mov_b32", s(base), lo), salu("s_and_b32", s(base + 1), hi, "0xffff"),
             salu("s_mov_b32", s(base + 2), size), salu("s_mov_b32", s(base + 3), "0x20000")]


def add64(code, lo, hi, off):
    code += [salu("s_add_u32", lo, lo, off), salu("s_addc_u32", hi, hi, 0)]


def stamp(code, idx, sreg=96, group="main"):
    if CFG["stamps"] and (idx == 0 or CFG.get("stgroup", "main") == group):
        code += [raw(f"s_memtime s[{sreg}:{sreg + 1}]", "smem", defs={f"s{sreg}", f"s{sreg + 1}"}),
                 raw(f"s_memrealtime s[{sreg + 2}:{sreg + 3}]", "smem", defs={f"s{sreg + 2}", f"s{sreg + 3}"}),
                 salu("s_mov_b32", s(70 + idx), s(sreg)), salu("s_mov_b32", s(82 + idx), s(sreg + 2))]


def store_stamps(code, n, ws_lo, ws_hi, region, s_w):
    if not CFG["stamps"]:
        return
    code += [salu("s_add_u32", s(60), ws_lo, hex(region)), salu("s_addc_u32", s(61), ws_hi, 0)]
    srd(code, 64, s(60), s(61), hex(256 * 4 * 128))
    code += [salu("s_lshl_b32", s(62), s(2), 9), salu("s_lshl_b32", s(63), s_w, 7),
             salu("s_add_u32", s(62), s(62), s(63)), valu("v_mov_b32", v(1), 0)]
    for i in range(n):
        code += [valu("v_mov_b32", v(2), s(70 + i)),
                 buf_store("buffer_store_dword", v(2), v(1), s(64, 4), s(62), 4 * i),
                 valu("v_mov_b32", v(3), s(82 + i)),
                 buf_store("buffer_store_dword", v(3), v(1), s(64, 4), s(62), 64 + 4 * i)]


S_X, S_WQ, S_K, S_V, S_O = 4, 8, 12, 16, 20
S_W, S_ROT, S_KX, S_KW, S_T0, S_T1, S_LX, S_LW, S_LK, S_OFF = 24, 25, 26, 27, 28, 29, 30, 31, 32, 33
S_WS = 34
S_WOP, S_OUTP = 68, 94
S_KVO = 100
QSLOT = 53248
XB = 20480
V_DX = 1
V_DW = 3
V_RX = 4
V_RW = 7
V_DK = 13
V_RK = 17
V_RV = 19
V_ST = 21
V_T = 22
V_Q, V_S, V_P, V_NM, V_KF, V_VF = 32, 112, 152, 192, 212, 228
V_ACC = 96
A_O, A_L, A_ONE = 0, 160, 180
A_XF, A_WF = 0, 80
A_SHORT, A_LONG = 104, 216
A_KF = 184
V_DUMP = 28


S_FLAG, S_DBG, S_CODE = 36, 40, 44
S_BR, S_B, S_HP, S_MYFLAG = 60, 61, 62, 63
S_TILE, S_PFLAG, S_XCC, S_WARM = 64, 65, 66, 101
S_ODDM, S_ODDO, S_EVENO, S_ODDX = 67, 3, 101, 54
V_ONE = 31


def k1_prologue_early():
    c = [salu("s_cmp_ge_u32", s(2), 256), raw("s_cbranch_scc1 L_end", "branch", uses={"scc"})]
    R_ = CFG["qrot"]
    c += [salu("s_xor_b32", s(3), s(2), CFG.get("swap", 0)),
          salu("s_and_b32", s(56), s(3), 7), salu("s_lshr_b32", s(57), s(3), 3),
          salu("s_lshr_b32", s(S_BR), s(56), 2),
          salu("s_mul_i32", s(58), s(S_BR), 40),
          salu("s_add_u32", s(46), s(0), s(58)), salu("s_addc_u32", s(47), s(1), 0),
          smem("s_load_dwordx8", s(48, 8), s(46, 2), 0),
          smem("s_load_dwordx4", s(64, 4), s(0, 2), 88),
          smem("s_load_dwordx2", s(S_WOP, 2), s(46, 2), 32), smem("s_load_dwordx2", s(S_OUTP, 2), s(0, 2), 80),
          salu("s_bfe_u32", s(S_B), s(56), "0x10001"), salu("s_lshl_b32", s(S_B), s(S_B), 2),
          salu("s_and_b32", s(58), s(57), 3), salu("s_add_u32", s(S_B), s(S_B), s(58)),
          salu("s_lshr_b32", s(59), s(57), 2),
          salu("s_and_b32", s(S_HP), s(56), 1), salu("s_lshl_b32", s(S_HP), s(S_HP), 3),
          salu("s_add_u32", s(S_HP), s(S_HP), s(59))]
    if R_ == 8:
        c += [salu("s_lshl_b32", s(58), s(58), 1)]
    c += [salu("s_add_u32", s(S_ROT), s(58), s(59))]
    L, W, T0, T1, T2 = v(V_T), v(V_T + 1), v(V_T + 2), v(V_T + 3), v(V_T + 4)
    c += [valu("v_and_b32", L, 63, v(0)), valu("v_lshrrev_b32", W, 6, v(0)),
          valu("v_readfirstlane_b32", s(S_W), W)]
    c += [valu("v_bfe_u32", T0, L, 2, 3), valu("v_lshlrev_b32", T0, 11, T0),
          valu("v_lshrrev_b32", T1, 5, L), valu("v_lshl_add_u32", T0, T1, 6, T0),
          valu("v_mul_u32_u24", T1, 81920, W), valu("v_add_u32", T0, T0, T1),
          valu("v_and_b32", T1, 3, L), valu("v_and_b32", T2, 1, W), valu("v_lshlrev_b32", T2, 1, T2),
          valu("v_xor_b32", T1, T1, T2), valu("v_lshl_add_u32", v(V_DX), T1, 4, T0),
          valu("v_xor_b32", v(V_DX + 1), 32, v(V_DX))]
    c += [valu("v_bfe_u32", T0, L, 4, 1), valu("v_bfe_u32", T1, L, 2, 2),
          valu("v_lshl_add_u32", T1, T0, 3, T1), valu("v_lshlrev_b32", T1, 13, T1),
          valu("v_lshrrev_b32", T2, 5, L), valu("v_lshl_add_u32", T1, T2, 6, T1),
          valu("v_and_b32", T2, 3, L), valu("v_lshlrev_b32", T0, 1, T0), valu("v_xor_b32", T2, T2, T0),
          valu("v_lshl_add_u32", T1, T2, 4, T1), valu("v_lshl_add_u32", v(V_DW), W, 7, T1)]
    c += [salu("s_mul_i32", s(S_LX), s(S_W), 5120),
          salu("s_lshl_b32", s(S_LW), s(S_W), 13), salu("s_add_u32", s(S_LW), s(S_LW), XB),
          salu("s_mul_i32", s(56), s(S_B), 327680), salu("s_lshl_b32", s(58), s(S_HP), 9),
          salu("s_sub_u32", s(57), 8388608, s(58))]
    stamp(c, 1, group="s")
    add64(c, s(48), s(49), s(56))
    srd(c, S_X, s(48), s(49), 327680)
    add64(c, s(54), s(55), s(58))
    srd(c, S_WQ, s(54), s(55), s(57))
    c += [salu("s_lshl_b32", s(56), s(S_B), 22), salu("s_lshl_b32", s(57), s(S_HP), 18),
          salu("s_add_u32", s(56), s(56), s(57))]
    add64(c, s(50), s(51), s(56))
    add64(c, s(52), s(53), s(56))
    if CFG["tlb"]:
        c += [smem("s_load_dword", s(48), s(50, 2), 0), smem("s_load_dword", s(49), s(52, 2), 0)]
    return c


def touch_code(lo, hi):
    if not CFG["touch"]:
        return []
    return [raw(f"s_mov_b32 s{S_T0}, ({lo} - L_code0) & 0xffffff80", "salu", defs={f"s{S_T0}"}),
            raw(f"s_mov_b32 s{S_CODE + 2}, {hi} - L_code0", "salu", defs={f"s{S_CODE + 2}"}),
            buf_load("buffer_load_dword", v(V_TCH + 1), v(V_TCH), s(S_CODE, 4), s(S_T0), 0, tag=("t", lo))]


V_TCH = 29


def k1_prologue_late():
    c = []
    L, W, T0, T1, T2, T3 = v(V_T), v(V_T + 1), v(V_T + 2), v(V_T + 3), v(V_T + 4), v(V_T + 5)
    c += [salu("s_mov_b32", s(S_WS), s(66)), salu("s_mov_b32", s(S_WS + 1), s(67))]
    srd(c, S_DBG, s(64), s(65), 256)
    c += [salu("s_add_u32", s(58), s(S_WS), hex(FLAG_OFF)), salu("s_addc_u32", s(59), s(S_WS + 1), 0)]
    srd(c, S_FLAG, s(58), s(59), hex(2 * PFLAG))
    c += [salu("s_lshl_b32", s(56), s(S_BR), 3), salu("s_add_u32", s(56), s(56), s(S_B)),
          salu("s_lshl_b32", s(57), s(56), 4), salu("s_add_u32", s(57), s(57), s(S_HP)),
          salu("s_lshl_b32", s(57), s(57), 2), salu("s_add_u32", s(57), s(57), s(S_W)),
          salu("s_lshl_b32", s(S_MYFLAG), s(57), 2),
          salu("s_lshl_b32", s(56), s(56), 3), salu("s_and_b32", s(57), s(S_HP), 7),
          salu("s_add_u32", s(S_TILE), s(56), s(57)),
          salu("s_lshl_b32", s(57), s(S_TILE), 2), salu("s_add_u32", s(57), s(57), s(S_W)),
          salu("s_lshl_b32", s(57), s(57), 2), salu("s_add_u32", s(S_PFLAG), s(57), hex(PFLAG)),
          salu("s_bitcmp1_b32", s(S_HP), 3), salu("s_cselect_b32", s(56), hex(4 * PFLAG), s(S_PFLAG))]
    c += [valu("v_mov_b32", v(V_ONE), hex(NEVER)), valu("v_cmp_ne_u32", "vcc", 0, L),
          valu("v_cndmask_b32", v(V_ONE), 0, v(V_ONE)), valu("v_mov_b32", T0, 0),
          raw(f"s_getreg_b32 s{S_XCC}, hwreg(HW_REG_XCC_ID, 0, 4)", "salu", defs={f"s{S_XCC}"}),
          valu("v_mov_b32", T1, s(S_XCC)),
          buf_store("buffer_store_dword", T1, v(V_ONE), s(S_FLAG, 4), s(S_MYFLAG), 0, "sc1", tag=("clr", 0)),
          buf_store("buffer_store_dword", T0, v(V_ONE), s(S_FLAG, 4), s(56), 0, "sc1", tag=("clr", 0))]
    if CFG["touch"]:
        c += [raw("s_getpc_b64 s[58:59]", "salu", defs={"s58", "s59"}), label("L_pc"),
              raw("s_sub_u32 s58, s58, L_pc - L_code0", "salu", defs={"s58", "scc"}, uses={"s58"}),
              salu("s_subb_u32", s(59), s(59), 0)]
        srd(c, S_CODE, s(58), s(59), 0)
        c += [salu("s_lshr_b32", s(56), s(2), 3), salu("s_lshl_b32", s(56), s(56), 7),
              valu("v_lshlrev_b32", T0, 12, v(0)), valu("v_add_u32", T0, s(56), T0),
              valu("v_mov_b32", v(V_TCH), hex(NEVER)), valu("v_cmp_gt_u32", "vcc", 32, v(0)),
              valu("v_cndmask_b32", v(V_TCH), v(V_TCH), T0)]
        c += touch_code("L_code0", "L_att")
    c += [valu("v_bfe_u32", T0, L, 3, 1), valu("v_and_b32", T1, 7, L), valu("v_lshlrev_b32", T1, 6, T1),
          valu("v_lshl_add_u32", T1, T0, 10, T1), valu("v_lshrrev_b32", T2, 4, L),
          valu("v_lshlrev_b32", T0, 1, T0), valu("v_xor_b32", T2, T2, T0), valu("v_lshl_add_u32", T1, T2, 4, T1),
          valu("v_and_b32", T0, 1, W), valu("v_mul_u32_u24", T0, 10240, T0), valu("v_add_u32", v(V_RX), T0, T1),
          valu("v_add_u32", v(V_RX + 1), QSLOT, v(V_RX)), valu("v_add_u32", v(V_RX + 2), 2 * QSLOT, v(V_RX))]
    c += [valu("v_lshrrev_b32", T0, 5, L), valu("v_lshlrev_b32", T0, 11, T0),
          valu("v_bfe_u32", T1, L, 2, 2), valu("v_lshl_add_u32", T0, T1, 6, T0),
          valu("v_bfe_u32", T1, L, 4, 1), valu("v_mul_u32_u24", T1, 288, T1), valu("v_add_u32", T0, T0, T1),
          valu("v_and_b32", T1, 3, L), valu("v_lshl_add_u32", T0, T1, 3, T0),
          valu("v_lshrrev_b32", T1, 1, W), valu("v_lshl_add_u32", T0, T1, 14, T0),
          valu("v_add_u32", v(V_RW), XB, T0), valu("v_xor_b32", v(V_RW + 1), 32, v(V_RW))]
    for sl in (1, 2):
        c += [valu("v_add_u32", v(V_RW + 2 * sl), sl * QSLOT, v(V_RW)),
              valu("v_add_u32", v(V_RW + 2 * sl + 1), sl * QSLOT, v(V_RW + 1))]
    c += [valu("v_bfe_u32", T0, L, 2, 2), valu("v_lshlrev_b32", T0, 8, T0),
          valu("v_lshrrev_b32", T1, 4, L), valu("v_lshl_add_u32", T0, T1, 6, T0),
          valu("v_and_b32", T1, 3, L), valu("v_lshl_add_u32", T0, T1, 4, T0),
          valu("v_lshrrev_b32", T1, 1, W), valu("v_lshl_add_u32", T0, T1, 17, T0),
          valu("v_and_b32", T1, 1, W), valu("v_lshl_add_u32", v(V_DK), T1, 12, T0)]
    for rq in (1, 2, 3):
        c += [valu("v_xor_b32", v(V_DK + rq), 16 * rq, v(V_DK))]
    c += [valu("v_bfe_u32", T0, L, 2, 2), valu("v_and_b32", T1, 3, L), valu("v_lshlrev_b32", T1, 6, T1),
          valu("v_lshl_add_u32", T1, T0, 10, T1), valu("v_lshrrev_b32", T2, 5, L), valu("v_xor_b32", T2, T2, T0),
          valu("v_lshl_add_u32", T1, T2, 4, T1), valu("v_bfe_u32", T2, L, 4, 1),
          valu("v_lshl_add_u32", T1, T2, 3, T1), valu("v_lshrrev_b32", T3, 1, W),
          valu("v_lshl_add_u32", T1, T3, 13, T1), valu("v_add_u32", v(V_RK), 2 * 32768, T1),
          valu("v_xor_b32", v(V_RK + 1), 32, v(V_RK))]
    c += [valu("v_lshrrev_b32", T0, 4, L), valu("v_lshlrev_b32", T0, 10, T0),
          valu("v_bfe_u32", T1, L, 2, 2), valu("v_lshl_add_u32", T0, T1, 6, T0),
          valu("v_bfe_u32", T1, L, 4, 1), valu("v_lshl_add_u32", T0, T1, 5, T0),
          valu("v_and_b32", T1, 3, L), valu("v_lshl_add_u32", T0, T1, 3, T0),
          valu("v_lshl_add_u32", T0, T3, 13, T0), valu("v_add_u32", v(V_RV), 2 * 32768 + 16384, T0),
          valu("v_xor_b32", v(V_RV + 1), 32, v(V_RV))]
    c += [valu("v_mul_u32_u24", T0, 40960, T3), valu("v_and_b32", T1, 1, W), valu("v_mul_u32_u24", T1, 5120, T1),
          valu("v_lshl_add_u32", T0, L, 4, T0), valu("v_add_u32", v(V_ST), T0, T1)]
    c += [valu("v_lshlrev_b32", T0, 12, W), valu("v_lshl_add_u32", v(V_DUMP), L, 4, T0)]
    c += [valu("v_mov_b32", T0, "0x3f803f80")]
    for i in range(4):
        c += [valu("v_accvgpr_write_b32", a(A_ONE + i), T0)]
    c += p2_selectors()
    srd(c, S_K, s(50), s(51), 262144)
    srd(c, S_V, s(52), s(53), 262144)
    c += [salu("s_lshl_b32", s(56), s(S_BR), 3), salu("s_add_u32", s(56), s(56), s(S_B)),
          salu("s_mul_i32", s(56), s(56), 1310720),
          salu("s_add_u32", s(58), s(S_WS), s(56)), salu("s_addc_u32", s(59), s(S_WS + 1), 0)]
    srd(c, S_O, s(58), s(59), 1310720)
    c += [salu("s_mul_i32", s(S_OFF), s(S_HP), 81920), salu("s_lshl_b32", s(S_LK), s(S_W), 12)]
    if CFG["odd_only"]:
        c += [salu("s_bitcmp1_b32", s(S_XCC), 0), salu("s_cselect_b32", s(S_ODDM), "0x28000", 0),
              salu("s_cselect_b32", s(S_ODDO), "0x100000", 0), salu("s_cselect_b32", s(S_EVENO), 0, "0x100000"),
              salu("s_cselect_b64", s(S_ODDX, 2), -1, 0)]
    if CFG["wo_warm"]:
        srd(c, 52, s(S_WOP), s(S_WOP + 1), 8388608)
        c += [salu("s_lshl_b32", s(56), s(S_B), 4), salu("s_add_u32", s(56), s(56), s(S_HP)),
              salu("s_lshl_b32", s(S_WARM), s(56), 16),
              valu("v_mul_u32_u24", T1, warm_lanes(), W), valu("v_add_u32", T1, T1, L),
              valu("v_lshlrev_b32", T1, 7, T1), valu("v_mov_b32", v(V_T + 2), hex(NEVER)),
              valu("v_cmp_gt_u32", "vcc", warm_lanes(), L), valu("v_cndmask_b32", v(V_T + 2), v(V_T + 2), T1)]
    if CFG["kv_cap"]:
        c += [raw("s_getreg_b32 s56, hwreg(HW_REG_XCC_ID)", "salu", defs={"s56"}),
              salu("s_bitcmp1_b32", s(56), 0), salu("s_cselect_b64", "vcc", -1, 0)]
    return c


def warm_lanes():
    return -(-128 // len(ints(CFG["wo_warm"])))


def rot_index(dst, rot, n, R_):
    if R_ == 1:
        return [salu("s_mov_b32", dst, n)]
    c = [salu("s_add_u32", dst, rot, n & (R_ - 1)), salu("s_and_b32", dst, dst, R_ - 1)]
    if n & ~(R_ - 1):
        c += [salu("s_or_b32", dst, dst, n & ~(R_ - 1))]
    return c


def q_stage_ops(j):
    sl = (j % 3) * QSLOT
    setup = rot_index(s(S_T0), s(S_ROT), j, CFG["qrot"])
    setup += [salu("s_lshl_b32", s(S_KX), s(S_T0), 7), salu("s_lshl_b32", s(S_KW), s(S_T0), 19)]
    ops = []
    for n in range(8):
        st, gu, hf = n >> 2, (n >> 1) & 1, n & 1
        ops.append((salu("s_add_u32", "m0", s(S_LW), sl + n * 1024),
                    salu("s_add_u32", s(S_T1), s(S_KW), (32 * st + 16 * gu + 4 * hf) * 8192),
                    buf_dma(v(V_DW), s(S_WQ, 4), s(S_T1), 0, CFG["xw_flags"], tag=("q", j))))
    xo = []
    for t in range(5):
        xo.append((salu("s_add_u32", "m0", s(S_LX), sl + t * 1024),
                   salu("s_add_u32", s(S_T1), s(S_KX), t * 16384),
                   buf_dma(v(V_DX + (t & 1)), s(S_X, 4), s(S_T1), 0, CFG["xw_flags"], tag=("q", j))))
    order = [xo[0], ops[0], ops[1], xo[1], ops[2], ops[3], xo[2], ops[4], xo[3], ops[5], ops[6], xo[4], ops[7]]
    if j == 0:
        order = [ops[0], xo[0], ops[1], xo[1], ops[2], xo[2], ops[3], xo[3], xo[4]] + ops[4:]
        for _, _, d in order[:9]:
            d.tag = ("q", -1)
    return setup, order


OUTLINE = []


def even_cap():
    if CFG.get("cap_all"):
        return [wait(vm=CFG["kv_cap"])]
    k = len(OUTLINE)
    OUTLINE.extend([label(f"L_cap{k}"), raw(f"s_waitcnt vmcnt({CFG['kv_cap']})"), raw(f"s_branch L_capback{k}")])
    return [raw(f"s_cbranch_vccz L_cap{k}", "xbranch", uses={"vcc"}), Ins(f"L_capback{k}:", "xlabel")]


def ints(x):
    return [int(y) for y in str(x).split(",") if y != ""]


class KVStream:
    def __init__(self):
        short, long_ = ints(CFG["st_short"]), ints(CFG["st_long"])
        nst = sum(int(x.split(":")[1]) for x in CFG["stash"].split(",") if x)
        assert nst % 4 == 0
        cand = [(c, isv) for c in short + long_ for isv in range(2)][:nst // 4]
        self.reg = {}
        ns = nl = 0
        for c, isv in cand:
            if c in short:
                self.reg[(c, isv)] = A_SHORT + 16 * ns
                ns += 1
            else:
                self.reg[(c, isv)] = A_LONG + 16 * nl
                nl += 1
        assert A_SHORT + 16 * ns <= A_ONE and A_LONG + 16 * nl <= 248
        self.parked = [(c, isv, rq) for c, isv in cand for rq in range(4)]
        self.dma = [(c, isv, rq) for c in range(16) for isv in range(2)
                    if (c, isv) not in self.reg or CFG["odd_only"] for rq in range(4)]

    def left(self):
        return len(self.dma)

    def peek(self):
        return self.dma[0][:2]

    @staticmethod
    def voff(isv, rq):
        return v(V_DK + (rq if not isv else 2 * (rq & 1)))

    def next(self):
        c, isv, rq = self.dma.pop(0)
        sc = []
        if rq == 0:
            sc = [salu("s_add_u32", "m0", s(S_LK), ((c + 2) % 5) * 32768 + isv * 16384),
                  salu("s_mov_b32", s(S_KVO), c * 8192)]
            if (c, isv) in self.reg:
                sc = [[sc[0], salu("s_max_u32", "m0", "m0", s(S_ODDM))],
                      salu("s_add_u32", s(S_KVO), s(S_ODDO), c * 8192)]
        return sc, buf_dma(self.voff(isv, rq), s(S_V if isv else S_K, 4), s(S_KVO), rq * 1024, CFG["kv_flags"],
                           tag=("v" if isv else "k", c))

    def next_parked(self):
        c, isv, rq = self.parked.pop(0)
        sc = [salu("s_add_u32", s(S_KVO), s(S_EVENO), c * 8192) if CFG["odd_only"] else
              salu("s_mov_b32", s(S_KVO), c * 8192)] if rq == 0 else []
        return sc, buf_load("buffer_load_dwordx4", a(self.reg[(c, isv)] + 4 * rq, 4), self.voff(isv, rq),
                            s(S_V if isv else S_K, 4), s(S_KVO), rq * 1024, CFG["kv_flags"], tag=("park", c))

    def dump(self, c, isv):
        t = v(V_T + 3)
        wr = [ds_write("ds_write_b128", t, a(self.reg[(c, isv)] + 4 * rq, 4), rq * 1024) for rq in range(4)]
        if CFG["odd_only"]:
            wr = [[salu("s_mov_b64", "exec", s(S_ODDX, 2)), w, salu("s_mov_b64", "exec", -1)] for w in wr]
        return [valu("v_add_u32", t, ((c + 2) % 5) * 32768 + isv * 16384, v(V_DUMP))] + wr

    def place(self, G, positions, free_from, cap=True):
        last = -10
        for g in positions:
            g = max(int(g), free_from(*self.peek()), last + (3 if self.dma[0][2] == 0 else 1))
            sc, d = self.next()
            for i, o in enumerate(sc):
                G.put(g - 2 + i, *(o if isinstance(o, list) else [o]))
            last = G.place(d, g, g + 2)
            if CFG["kv_cap"] and cap:
                G.put(last, *even_cap())
        return last


KV = None


def acc_q(T, qb):
    return v(V_ACC + (qb * 8 + T) * 4, 4)


def k1_qproj():
    pre = []
    setup, order = q_stage_ops(0)
    pre += setup
    for m0, so, dma in order:
        pre += [m0, so, dma]
    stamp(pre, 2, group="s")
    pre += k1_prologue_late()
    stamp(pre, 3, group="s")
    wf = lambda j, st, T: A_WF + 4 * ((16 * j + (8 * st + T if j == 0 else 2 * T + st)) % 6)
    xf = lambda j, st, qb: A_XF + 20 * (2 * (j & 1) + st) + 4 * qb
    mf = []
    for j in range(16):
        seq = [(st, T, qq) for st in range(2) for T in range(8) for qq in range(5)] if j == 0 else \
              [((i + qq + T) & 1, T, qq) for T in range(8) for qq in range(5) for i in range(2)]
        for st, T, qq in seq:
            qb = qq if T % 2 == 0 else 4 - qq
            d = acc_q(T, qb)
            mf.append(mfma(d, a(wf(j, st, T), 4), a(xf(j, st, qb), 4), 0 if (j == 0 and st == 0) else d))
    G = Gaps(mf)

    def a_reads(j, st, T):
        base = v(V_RW + 2 * (j % 3) + (T & 1))
        return [ds_read("ds_read_b64_tr_b16", a(wf(j, st, T) + 2 * hf, 2), base,
                        (T >> 2) * 8192 + st * 4096 + hf * 1024 + ((T >> 1) & 1) * 512) for hf in range(2)]

    def b_read(j, st, qb):
        return ds_read("ds_read_b128", a(xf(j, st, qb), 4), v(V_RX + j % 3), qb * 2048 + st * 512)

    stamp(pre, 1)
    setup, order1 = q_stage_ops(1)
    pre += setup
    for m0, so, dma in order1[:7]:
        pre += [m0, so, dma]
    pre += [waitvm(lambda t: t == ("q", -1))]
    stamp(pre, 4, group="s")
    pre += [barrier()]
    stamp(pre, 5, group="s")
    stamp(pre, 2)
    for i, gg in enumerate((0, 30, 61, 63, 80 + 61, 80 + 63)):
        st = []
        stamp(st, 6 + i, group="s")
        G.put_seq(gg, *st)
    G.put(14, waitvm(lambda t: t == ("q", 0)), barrier())
    for i, (m0, so, dma) in enumerate(order1[11:]):
        G.put(2 * i, m0, so)
        G.put(2 * i + 1, dma)

    BAR = 58
    pre += [b_read(0, 0, 0)] + a_reads(0, 0, 0) + [b_read(0, 0, qb) for qb in range(1, 5)]
    for T in (1, 2, 3, 4):
        pre += a_reads(0, 0, T)
    for m0, so, dma in order1[7:11]:
        pre += [m0, so, dma]
    for f in range(5, 16):
        G.put(5 * (f - 5), *a_reads(0, f >> 3, f & 7))
    for qb in range(5):
        G.place(b_read(0, 1, qb), 12 + 5 * qb, 14 + 5 * qb)
    for j in range(1, 16):
        for T in range(8):
            for st in range(2):
                G.put(80 * j + 10 * (T - 2) + st, *a_reads(j, st ^ (T & 1), T))
        g = 80 * (j - 1) + BAR + 1
        for qb in range(5):
            for i in range(2):
                g = G.place(b_read(j, (i + qb) & 1, qb), g, g + 4) + (1 if i and not CFG["dense"] else 0)
        assert g < 80 * j - 2
    for j in range(16):
        g = 80 * j + BAR
        if j < 15:
            G.put(g, waitlds(), waitvm(lambda t, j=j: t in (("q", j + 1), ("clr", 0))), barrier())
        else:
            G.put(g, waitlds(), waitvm(lambda t: t == ("k", 0)), barrier())
        if j in (2, 12):
            st = []
            stamp(st, 1 + (j == 12), group="z")
            G.put(g, *st)
        QS = [0, 1, 2, 3, 5, 7, 8, 9, 10, 12, 15]
        if j in QS:
            st = []
            stamp(st, 1 + QS.index(j), group="q")
            G.put(g, *st)
    global KV
    KV = KVStream()
    park = dict(map(int, x.split(":")) for x in CFG["stash"].split(",") if x)
    g, last_miss, prev = 8, -1000, 3
    for j in range(2, 16):
        setup, order = q_stage_ops(j)
        miss = j % CFG["qrot"] == 0
        g = max(g, 80 * (j - 3) + BAR + 3 + len(setup))
        seq = [(([m0, so]), dma, miss) for m0, so, dma in order]
        seq[0] = (setup + seq[0][0], seq[0][1], miss)
        seq += [KV.next_parked() + (True,) for _ in range(park.get(j, 0))]
        if j in ints(CFG["wo_warm"]):
            i = ints(CFG["wo_warm"]).index(j)
            seq += [([salu("s_add_u32", s(S_KVO), s(S_WARM), i * warm_lanes() * 512)],
                     buf_load("buffer_load_dword", v(V_TCH + 1), v(V_T + 2), s(52, 4), s(S_KVO), 0, tag=("t", j)), True)]
        for i, (sc, op, is_miss) in enumerate(seq):
            prev = G.with_scalars(sc, op, g, max(prev, 80 * (j - 3) + BAR - 4))
            if i == 12:
                margin = 80 * (j - 1) + BAR - g
                print(f"; stage {j}: last load at gap {g}, {margin} gaps before it is needed", file=sys.stderr)
            if is_miss:
                last_miss = g
            g += CFG["slow"] if g - last_miss < CFG["lat"] else CFG["fast"]
    q_loads_end = max(g, prev + 4)
    G.put_seq(80 * 13 + BAR - 2, *touch_code("L_att", "L_out"))
    assert not KV.parked
    n, g0 = CFG["kv_q"], max(80 * 13 + BAR + 4, q_loads_end)
    first = min(n, CFG["kv_first"])
    pos = [g0 + 4 * i for i in range(first)]
    pos += [pos[-1] + (1276 - pos[-1]) * (i + 1) / (n - first) for i in range(n - first)]
    KV.place(G, pos, lambda c, isv: 80 * (13 if c == 0 else 14 if c < 3 else 15) + BAR + 3, CFG["cap_early"])
    return pre + G.flatten()


def s_t(kt, qb):
    return V_S + (kt * 5 + qb) * 4


def k_reads(c, f):
    kt, u = divmod(f, 4)
    return [ds_read("ds_read_b64", a(A_KF + 4 * f + 2 * jj, 2), v(V_RK + jj), kt * 4096 + u * 256) for jj in range(2)]


def v_reads(c, T):
    r = V_VF + 4 * (T % 4)
    return [ds_read("ds_read_b64_tr_b16", v(r + 2 * kt, 2), v(V_RV + (T & 1)), kt * 4096 + (T >> 1) * 256)
            for kt in range(2)]


def ring_step(reg, c_next):
    if (c_next + 2) % 5 == 0:
        return valu("v_subrev_u32", v(reg), 4 * 32768, v(reg))
    return valu("v_add_u32", v(reg), 32768, v(reg))


def x_mfmas(c):
    out = []
    for kt in range(2):
        for qb in range(5):
            d = v(s_t(kt, qb), 4)
            for i in range(4):
                u = i if qb % 2 == 0 else 3 - i
                cc = d if i else (0 if c == 0 else v(V_NM + 4 * qb, 4))
                out.append(mfma(d, a(A_KF + 4 * (4 * kt + u), 4), v(V_Q + (qb * 4 + u) * 4, 4), cc))
    return out


def p_reg(c, qb):
    return V_P + 20 * (c & 1) + 4 * qb


def y_mfmas(c):
    out = []
    for qb in range(5 if not CFG["vsum"] else 0):
        d = a(A_L + 4 * qb, 4)
        out.append(mfma(d, a(A_ONE, 4), v(p_reg(c, qb), 4), d if c else 0))
    for T in range(8):
        for qq in range(5):
            qb = qq if T % 2 == 0 else 4 - qq
            d = a(A_O + (T * 5 + qb) * 4, 4)
            out.append(mfma(d, v(V_VF + 4 * (T % 4), 4), v(p_reg(c, qb), 4), d if c else 0))
    return out


V_L = 212


def sum_ops(kt, qb, first):
    r, l = s_t(kt, qb), V_L + 2 * qb
    if first:
        return [valu("v_add_f32", v(l + h), v(r + 2 * h), v(r + 2 * h + 1)) for h in range(2)]
    return [valu("v_add_f32", v(l + (i & 1)), v(r + i), v(l + (i & 1))) for i in range(4)]


def softmax_ops(c, kt):
    out = []
    for qb in range(5):
        r = s_t(kt, qb)
        ex = [valu("v_exp_f32", v(r + i), v(r + i)) for i in range(4)]
        cv = [valu("v_cvt_pk_bf16_f32", v(p_reg(c, qb) + 2 * kt + h), v(r + 2 * h), v(r + 2 * h + 1)) for h in range(2)]
        out.append((ex, cv))
    return out


def k1_convert_q():
    c = [salu("s_mov_b32", s(56), hex(SCALE)), salu("s_mov_b32", s(57), hex(SCALE))]
    for qb in range(5):
        for u in range(4):
            for h in range(2):
                r = V_ACC + (qb * 8 + 2 * u + h) * 4
                c += [valu("v_pk_mul_f32", v(r + 2 * i, 2), v(r + 2 * i, 2), s(56, 2)) for i in range(2)]
            for h in range(2):
                r = V_ACC + (qb * 8 + 2 * u + h) * 4
                c += [valu("v_cvt_pk_bf16_f32", v(V_Q + (qb * 4 + u) * 4 + 2 * h + i), v(r + 2 * i), v(r + 2 * i + 1))
                      for i in range(2)]
    return c


RL = 244
L_LIMIT = 0x4b800000


def row_max_finish():
    c = []
    for op in ("v_permlane32_swap_b32", "v_permlane16_swap_b32"):
        c += [valu("v_mov_b32", v(V_NM + 4 * qb + 1), v(V_NM + 4 * qb)) for qb in range(5)]
        c += [perm(op, v(V_NM + 4 * qb), v(V_NM + 4 * qb + 1)) for qb in range(5)]
        c += [valu("v_max_f32", v(V_NM + 4 * qb), v(V_NM + 4 * qb), v(V_NM + 4 * qb + 1)) for qb in range(5)]
    for qb in range(5):
        m = V_NM + 4 * qb
        c += [valu("v_sub_f32", v(m + i), 0, v(m)) for i in (3, 2, 1, 0)]
    return c


def read_l(exact=False):
    if exact or not CFG["vsum"]:
        return [valu("v_accvgpr_read_b32", v(RL + 2 * qb), a(A_L + 4 * qb)) for qb in range(5)]
    c = [valu("v_add_f32", v(RL + 2 * qb), v(V_L + 2 * qb), v(V_L + 2 * qb + 1)) for qb in range(5)]
    for op in ("v_permlane32_swap_b32", "v_permlane16_swap_b32"):
        c += [valu("v_mov_b32", v(RL + 2 * qb + 1), v(RL + 2 * qb)) for qb in range(5)]
        c += [perm(op, v(RL + 2 * qb), v(RL + 2 * qb + 1)) for qb in range(5)]
        c += [valu("v_add_f32", v(RL + 2 * qb), v(RL + 2 * qb), v(RL + 2 * qb + 1)) for qb in range(5)]
    return c


def exact_softmax_fallback():
    DK, RK, RV, FR = V_P + 20, V_P + 24, V_P + 26, V_KF
    S_C, S_PRIV = S_KVO, S_T0
    c = [label("L_exact"), raw("s_waitcnt vmcnt(0) lgkmcnt(0)"), salu("s_lshl_b32", s(S_PRIV), s(S_W), 14)]
    c += [valu("v_and_b32", v(DK + i), "0xffffefff", v(V_DK + i)) for i in range(4)]
    for dst, src, off in ((RK, V_RK, 0), (RV, V_RV, 8192)):
        for i in range(2):
            c += [valu("v_and_b32", v(dst + i), "0xfff", v(src + i)), valu("v_add_u32", v(dst + i), off, v(dst + i)),
                  valu("v_add_u32", v(dst + i), s(S_PRIV), v(dst + i))]

    def load(isv):
        out = []
        for kt in range(2):
            out += [salu("s_add_u32", "m0", s(S_PRIV), isv * 8192 + kt * 4096),
                    salu("s_add_u32", s(S_T1), s(S_C), kt * 4096)]
            out += [buf_dma(v(DK + (rq if not isv else 2 * (rq & 1))), s(S_V if isv else S_K, 4), s(S_T1), rq * 1024)
                    for rq in range(4)]
        return out

    def scores(cinit):
        out = []
        for f in range(8):
            kt, u = divmod(f, 4)
            out += [ds_read("ds_read_b64", v(FR + 4 * f + 2 * jj, 2), v(RK + jj), kt * 4096 + u * 256)
                    for jj in range(2)]
            if f % 2:
                out += [waitlds()]
        for f in range(8):
            kt, u = divmod(f, 4)
            for qb in range(5):
                d = v(s_t(kt, qb), 4)
                out += [mfma(d, v(FR + 4 * f, 4), v(V_Q + (qb * 4 + u) * 4, 4), d if u else cinit(qb))]
        return out

    def loop(name, body):
        return [salu("s_mov_b32", s(S_C), 0), label(name)] + body + \
               [nop(8), salu("s_add_u32", s(S_C), s(S_C), 8192), salu("s_cmp_lt_u32", s(S_C), 131072),
                raw(f"s_cbranch_scc1 {name}", "branch", uses={"scc"})]

    c += [valu("v_mov_b32", v(V_NM + 4 * qb), "0xff800000") for qb in range(5)]
    body = load(0) + [wait(vm=0)] + scores(lambda qb: 0)
    for qb in range(5):
        m = v(V_NM + 4 * qb)
        for kt in range(2):
            r = s_t(kt, qb)
            body += [valu("v_max3_f32", m, m, v(r), v(r + 1)), valu("v_max3_f32", m, m, v(r + 2), v(r + 3))]
    c += loop("L_exact_max", body) + row_max_finish()
    c += [valu("v_accvgpr_write_b32", a(i), 0) for i in range(A_ONE)]
    body = load(0) + load(1) + [wait(vm=0)] + scores(lambda qb: v(V_NM + 4 * qb, 4))
    for kt in range(2):
        for ex, cv in softmax_ops(0, kt):
            body += ex + cv
    for T in range(8):
        body += [ds_read("ds_read_b64_tr_b16", v(FR + 4 * T + 2 * kt, 2), v(RV + (T & 1)), kt * 4096 + (T >> 1) * 256)
                 for kt in range(2)]
        if T % 2:
            body += [waitlds()]
    for qb in range(5):
        d = a(A_L + 4 * qb, 4)
        body += [mfma(d, a(A_ONE, 4), v(p_reg(0, qb), 4), d)]
    for T in range(8):
        for qb in range(5):
            d = a(A_O + (T * 5 + qb) * 4, 4)
            body += [mfma(d, v(FR + 4 * T, 4), v(p_reg(0, qb), 4), d)]
    c += loop("L_exact_pv", body) + read_l(True) + [raw("s_branch L_checked", "branch")]
    return c


def k1_attention():
    c = []
    conv = k1_convert_q()
    head = []
    for f in range(4):
        head += k_reads(0, f)

    def weave(code, n):
        step = len(code) // (n + 1) if n else 0
        for i in range(n):
            if KV.peek()[0] >= 5:
                break
            sc, d = KV.next()
            sc = [y for x in sc for y in (x if isinstance(x, list) else [x])]
            if CFG["kv_cap"] and CFG["cap_early"]:
                sc = sc + even_cap()
            at = (i + 1) * step + 3 * i
            code[at:at] = sc + [d]

    weave(conv, CFG["kv_c"])
    conv[len(conv) - 30:len(conv) - 30] = head
    dumps = [x for (c_, isv) in KV.reg if c_ < 5 for x in KV.dump(c_, isv)]
    at = [4 + i * (len(conv) - 8) // max(len(dumps), 1) for i in range(len(dumps))]
    for k, x in reversed(list(zip(at, dumps))):
        conv[k:k] = x if isinstance(x, list) else [x]
    c += [label("L_att")] + conv
    stamp(c, 3)
    G = Gaps(x_mfmas(0))
    for f in range(4, 8):
        G.put(3 * (f - 4), *k_reads(0, f))
    G.put(26, ring_step(V_RK, 1), ring_step(V_RK + 1, 1))
    nx = CFG["kv_x"] // 2
    nx = min(nx, sum(1 for x in KV.dma if x[0] < 5))
    KV.place(G, [7 + 30 * i / max(nx, 1) for i in range(nx)], lambda c, isv: 0, CFG["cap_early"])
    c += G.flatten()
    T = V_T
    for qb in range(5):
        r0, r1, m = s_t(0, qb), s_t(1, qb), V_NM + 4 * qb
        c += [valu("v_max3_f32", v(m), v(r0), v(r0 + 1), v(r0 + 2)),
              valu("v_max3_f32", v(m + 1), v(r0 + 3), v(r1), v(r1 + 1)),
              valu("v_max3_f32", v(m), v(m), v(r1 + 2), v(r1 + 3)),
              valu("v_max_f32", v(m), v(m), v(m + 1))]
    c += row_max_finish()
    c += [waitvm(lambda t: t in (("k", 1), ("v", 0))), waitlds(), barrier()]
    for f in range(4):
        c += k_reads(1, f)
    sm = []
    for kt in range(2):
        for qb in range(5):
            r = s_t(kt, qb)
            sm += [valu("v_add_f32", v(r + i), v(V_NM + 4 * qb), v(r + i)) for i in range(4)]
    for kt in range(2):
        for ex, cv in softmax_ops(0, kt):
            sm += ex
        for ex, cv in softmax_ops(0, kt):
            sm += cv
        if CFG["vsum"]:
            sm += [x for qb in range(5) for x in sum_ops(kt, qb, kt == 0)]
    weave(sm, CFG["kv_x"] - nx)
    assert KV.peek() >= (0, 0)
    c += sm
    stamp(c, 4)
    stamp(c, 1, group="a")
    mf = []
    start = []
    for p in range(16):
        start.append(len(mf))
        if p < 15:
            mf += x_mfmas(p + 1)
        mf += y_mfmas(p)
    G = Gaps(mf)
    ypos = [start[p] + (40 if p < 15 else 0) for p in range(16)]
    NS = 0 if CFG["vsum"] else 5
    BP = 24 + NS
    for p in range(16):
        g0, y0 = start[p], ypos[p]
        if p < 15:
            for f in range(4, 8):
                G.put(g0 + 4 * (f - 4), *k_reads(p + 1, f))
        for T in range(8):
            g = y0 - 15 + NS + 5 * T
            if p == 15 and g < y0:
                continue
            G.put(g, *v_reads(p, T))
        if p < 15:
            bar = y0 + BP
            need = [("k", p + 2), ("v", p + 1)]
            G.put(bar, waitlds(), waitvm(lambda t, need=need: t in need), barrier())
            if p in (2, 12):
                st = []
                stamp(st, 3 + (p == 12), group="z")
                G.put(bar, *st)
            AS = [0, 1, 2, 4, 6, 8, 10, 12, 13, 14]
            if p in AS:
                st = []
                stamp(st, 2 + AS.index(p), group="a")
                G.put(bar, *st)
            if p < 14:
                G.put(g0 + 22, ring_step(V_RK, p + 2))
                G.put(g0 + 23, ring_step(V_RK + 1, p + 2))
                for f in range(4):
                    G.put(bar + 1 + 3 * f, *k_reads(p + 2, f))
            G.put(bar - 2, ring_step(V_RV, p + 1))
            G.put(bar - 1, ring_step(V_RV + 1, p + 1))
            if p == 14:
                for T in range(3 - NS // 5):
                    G.put(bar + 1 + NS + 5 * T, *v_reads(15, T))
    n = KV.left()

    def free_from(c, isv):
        p = c - 5 if isv else c - 6
        return ypos[p] + BP + 3 if p >= 0 else 2

    kv_end = CFG["kv_end"] * len(mf) // 1320
    pos = [3 + (kv_end - 3) * i / (n - 1) for i in range(n)]
    if CFG["cluster"]:
        lead = [i - x[2] if i >= x[2] else 0 for i, x in enumerate(KV.dma)]
        pos = [pos[k] for k in lead]
    kv_last = KV.place(G, pos, free_from)
    sc, vc = p2_setup()
    g = start[2]
    for o in sc:
        while G.s[g]:
            g += 1
        G.put(g, *(o if isinstance(o, list) else [o]))
    g = start[2]
    for o in vc:
        g = G.place(o, g, g + 20) + 1

    g = kv_last + 6
    step = max(4, min(8, (len(mf) - 6 - g) // 16))
    for m, p in enumerate((10, 11, 11, 12)):
        for sc, op in p2_wo(m):
            g = max(g, ypos[p] + BP + 2 + len(sc))
            for q, o in enumerate(sc):
                G.put(g - 3 + (3 * q) // len(sc), o)
            g = G.place(op, g, g + 2) + step
    for c_, isv in KV.reg:
        if c_ >= 5:
            g = free_from(c_, isv) + (30 if isv else 0)
            for x in KV.dump(c_, isv):
                if isinstance(x, list):
                    while G.load(g) > 4:
                        g += 1
                    G.put_seq(g, *x)
                    g += 2
                else:
                    g = G.place(x, g, g + 6) + 1
    G.put(ypos[1] + 1, valu("v_mov_b32", v(V_T + 2), 1))
    G.put(ypos[1] + 2, salu("s_lshl_b32", s(S_T0), s(S_W), 12))
    G.put(ypos[1] + 3, Ins(f"buffer_atomic_add {v(V_T + 2)}, {v(V_ONE)}, {s(S_DBG, 4)}, {s(S_T0)} offen sc1", "vm_st",
                           (), regs_of(v(V_T + 2)) | regs_of(v(V_ONE)) | regs_of(s(S_DBG, 4)) | {f"s{S_T0}"},
                           tag=("cnt", 0)))
    zero, lane4, pf, pc = v(V2_T + 1), v(V2_T + 5), v(V2_T + 2), v(V2_T + 4)
    cnt_load = buf_load("buffer_load_dword", pc, zero, s(S_DBG, 4), 0, 0, "sc1")
    id_load = buf_load("buffer_load_dword", pf, lane4, s(S_FLAG, 4), s(S2_FL), 0, "sc1")
    g = start[9] + 1
    for o in (valu("v_mov_b32", zero, 0), valu("v_and_b32", lane4, 31, v(0)), valu("v_lshlrev_b32", lane4, 2, lane4),
              cnt_load):
        g = G.place(o, g, g + 10) + 1
    G.put_seq(start[11] + 2, *check("L_cnt", cnt_load, lambda: [valu("v_readfirstlane_b32", s(S_POLL), pc),
                                                                 salu("s_cmp_ge_u32", s(S_POLL), 256)]), id_load)
    g = G.place(valu("v_and_b32", pf, 15, pf), start[13] + 2, start[13] + 12)
    G.place(valu("v_cmp_eq_u32", s(54, 2), s(S_XCC), pf), g + 1, g + 10)
    ops = []
    for p in range(15):
        g0, nxt = start[p], start[p + 1]
        for kt in range(2):
            for qb, (ex, cv) in enumerate(softmax_ops(p + 1, kt)):
                done = g0 + 20 * kt + 4 * qb + 3
                hi = ypos[p + 1] + qb - 2
                if p < 14:
                    hi = min(hi, nxt + 20 * kt + 4 * qb - 1)
                base = len(ops)
                for i, e in enumerate(ex):
                    ops.append(dict(ins=e, lo=done + 4, hi=hi - 1 - (3 - i)))
                for h, x in enumerate(cv):
                    ops.append(dict(ins=x, lo=done + 4, hi=hi, deps=[base + 2 * h, base + 2 * h + 1]))
                if CFG["vsum"]:
                    hs = nxt + 20 * kt + 4 * qb - 1 if p < 14 else len(mf) - 1
                    for i, x in enumerate(sum_ops(kt, qb, False)):
                        ops.append(dict(ins=x, lo=done + 4, hi=hs, deps=[base + i]))
    G.put_seq(ypos[9] + 31, *touch_code("L_out", "L_end"))
    over = G.schedule(ops)
    print(f"; attention: {over} softmax ops placed in full gaps", file=sys.stderr)
    c += G.flatten()
    stamp(c, 5)
    c += [label("L_out"), barrier()]
    if CFG["tlb"]:
        c += [smem("s_load_dword", s(59), s(S_OUTP, 2), 0)]
    c += read_l() + [valu("v_add_f32", v(RL + 1), v(RL), v(RL + 2)), valu("v_add_f32", v(RL + 3), v(RL + 4), v(RL + 6)),
                     valu("v_add_f32", v(RL + 1), v(RL + 1), v(RL + 8)),
                     valu("v_add_f32", v(RL + 1), v(RL + 1), v(RL + 3)),
                     valu("v_cmp_nge_f32", "vcc",
                          hex(0 if CFG.get("force_exact") else 0x7f800000 if CFG.get("abl") else L_LIMIT), v(RL + 1)),
                     raw("s_cbranch_vccnz L_exact", "branch", uses={"vcc"}), label("L_checked")]
    OUTLINE.extend(exact_softmax_fallback())
    c += [salu("s_cmp_eq_u64", s(54, 2), -1), raw("s_cbranch_scc0 L_remote", "branch", uses={"scc"}),
          Ins("; local", "mark", tag="begin")]
    for qb in range(5):
        c += [valu("v_rcp_f32", v(RL + 2 * qb), v(RL + 2 * qb))]
    B0 = V_S
    n = 0
    for u in range(4):
        c += [salu("s_add_u32", s(S_T1), s(S_OFF), u * 10240)]
        for qb in range(5):
            tb = B0 + 12 * (n % 8)
            n += 1
            for h in range(2):
                c += [valu("v_accvgpr_read_b32", v(tb + 4 * h + i), a(A_O + ((2 * u + h) * 5 + qb) * 4 + i))
                      for i in range(4)]
            c += [valu("v_pk_mul_f32", v(tb + 2 * i, 2), v(tb + 2 * i, 2), v(RL + 2 * qb, 2), mods="op_sel_hi:[1,0]")
                  for i in range(4)]
            c += [valu("v_cvt_pk_bf16_f32", v(tb + 8 + i), v(tb + 2 * i), v(tb + 2 * i + 1)) for i in range(4)]
            if qb < 4:
                c += [buf_store("buffer_store_dwordx4", v(tb + 8, 4), v(V_ST), s(S_O, 4), s(S_T1), qb * 1024,
                                CFG["o_st_flags"], tag=("ost", 0))]
            else:
                c += [salu("s_add_u32", s(S_KVO), s(S_T1), 4096),
                      buf_store("buffer_store_dwordx4", v(tb + 8, 4), v(V_ST), s(S_O, 4), s(S_KVO), 0,
                                CFG["o_st_flags"], tag=("ost", 0))]
    stamp(c, 6)
    return c


S2_WO, S2_OUT, S2_PART = 8, 4, 12
S2_ROT, S2_KO, S2_KW, S2_T0, S2_T1, S2_LO, S2_KB, S_SPIN, S_POLL = 25, 26, 27, 28, 29, 30, 31, 67, 101
S2_FL, S2_PLD = 48, 49
V2_DW, V2_DO, V2_RW, V2_RO, V2_ST, V2_PX, V2_T = 1, 5, 7, 9, 11, 12, 22
A2_OF, A2_WF = 0, 80
V2_ACC, V2_IN = 96, 176
WO_SLOT = [98304, 114688, 131072, 147456, 81920]
V2_RW2 = 216


def p2_kidx(m):
    S2_HL4 = 58
    if CFG["own_first"]:
        return [salu("s_add_u32", s(S2_T0), s(S2_ROT), m & 3), salu("s_and_b32", s(S2_T0), s(S2_T0), 3),
                salu("s_add_u32", s(S2_T0), s(S2_T0), s(S2_HL4)),
                salu("s_add_u32", s(S2_T0), s(S2_T0), m & ~3), salu("s_and_b32", s(S2_T0), s(S2_T0), 31),
                salu("s_lshl1_add_u32", s(S2_T0), s(S2_T0), s(S2_KB))]
    return rot_index(s(S2_T0), s(S2_ROT), m, CFG["orot"]) + \
        [salu("s_lshl_b32", s(S2_T0), s(S2_T0), 1), salu("s_add_u32", s(S2_T0), s(S2_T0), s(S2_KB))]


def p2_wo(m):
    sc = p2_kidx(m) + [salu("s_lshl_b32", s(S2_KW), s(S2_T0), 16),
                       salu("s_add_u32", "m0", s(S_LK), WO_SLOT[m % CFG["wo_slots"]])]
    return [(sc if rq == 0 else [], buf_dma(v(V2_DW + rq), s(S2_WO, 4), s(S2_KW), rq * 1024, CFG["wo_flags"],
                                            tag=("w", m))) for rq in range(4)]


def p2_o(m):
    sc = p2_kidx(m) + [salu("s_mul_i32", s(S2_KO), s(S2_T0), 10240),
                       salu("s_add_u32", "m0", s(S2_LO), (m % 4) * 20480)]
    out = [(sc if i == 0 else [], buf_dma(v(V2_DO), s(S_O, 4), s(S2_KO), i * 1024, CFG["o_ld_flags"], tag=("w", m)))
           for i in range(4)]
    out.append(([salu("s_add_u32", "m0", s(S2_LO), (m % 4) * 20480 + 4096)],
                buf_dma(v(V2_DO + 1), s(S_O, 4), s(S2_KO), 0, CFG["o_ld_flags"], tag=("w", m))))
    return out


def flat(pairs):
    return [x for sc, op in pairs for x in sc + [op]]


def p2_setup():
    sc = [salu("s_and_b32", s(56), s(S_HP), 7), salu("s_and_b32", s(57), s(S_B), 3)]
    if CFG["orot"] == 8:
        sc += [salu("s_lshl_b32", s(57), s(57), 1)]
    sc += [salu("s_add_u32", s(S2_ROT), s(56), s(57)), salu("s_lshl_b32", s(58), s(56), 2),
           salu("s_lshr_b32", s(S2_KB), s(S_HP), 3), salu("s_lshl_b32", s(S2_KB), s(S2_KB), 6),
           salu("s_mul_i32", s(S2_LO), s(S_W), 5120),
           salu("s_and_b32", s(S2_FL), s(S_MYFLAG), "0xffffff80"),
           salu("s_lshl_b32", s(56), s(56), 8)]
    sc.append([salu("s_add_u32", s(S_WOP), s(S_WOP), s(56)), salu("s_addc_u32", s(S_WOP + 1), s(S_WOP + 1), 0)])
    sc += [salu("s_sub_u32", s(57), 8388608, s(56))]
    srd(sc, S2_WO, s(S_WOP), s(S_WOP + 1), s(57))
    sc += [salu("s_mul_i32", s(57), s(S_B), 655360), salu("s_add_u32", s(56), s(56), s(57)),
           salu("s_lshl_b32", s(57), s(S_BR), 11), salu("s_add_u32", s(56), s(56), s(57))]
    sc.append([salu("s_add_u32", s(S_OUTP), s(S_OUTP), s(56)), salu("s_addc_u32", s(S_OUTP + 1), s(S_OUTP + 1), 0)])
    sc += [salu("s_sub_u32", s(57), 5242880, s(56))]
    srd(sc, S2_OUT, s(S_OUTP), s(S_OUTP + 1), s(57))
    sc += [salu("s_mul_i32", s(56), s(S_TILE), 40960), salu("s_add_u32", s(56), s(56), hex(PART_OFF))]
    sc.append([salu("s_add_u32", s(50), s(S_WS), s(56)), salu("s_addc_u32", s(51), s(S_WS + 1), 0)])
    sc.append([salu("s_bitcmp1_b32", s(S_HP), 3), salu("s_cselect_b32", s(S2_PLD), 0, "0x100000")])
    L, W, T0, T1 = v(V_T), v(V_T + 1), v(V_T + 4), v(V_T + 5)
    vc = [valu("v_lshrrev_b32", T0, 4, L), valu("v_lshlrev_b32", T0, 6, T0), valu("v_bfe_u32", T1, L, 2, 2),
          valu("v_lshl_add_u32", T0, T1, 11, T0), valu("v_and_b32", T1, 3, L), valu("v_lshl_add_u32", T0, T1, 4, T0),
          valu("v_lshl_add_u32", T0, W, 15, T0), valu("v_xor_b32", T1, 32, T0)]
    vc += [valu("v_add_u32", v(V2_DW + rq), 4 * rq * 2048 - rq * 1024, T1 if rq & 1 else T0) for rq in range(4)]
    vc += [valu("v_mul_u32_u24", T0, 5120, W), valu("v_lshl_add_u32", v(V2_DO), L, 4, T0),
           valu("v_add_u32", v(V2_DO + 1), 4096, v(V2_DO))]
    vc += [valu("v_lshrrev_b32", T0, 4, L), valu("v_lshlrev_b32", T0, 10, T0),
           valu("v_bfe_u32", T1, L, 2, 2), valu("v_lshl_add_u32", T0, T1, 6, T0),
           valu("v_bfe_u32", T1, L, 4, 1), valu("v_lshl_add_u32", T0, T1, 5, T0),
           valu("v_and_b32", T1, 3, L), valu("v_lshl_add_u32", T0, T1, 3, T0),
           valu("v_lshrrev_b32", T1, 1, W), valu("v_lshl_add_u32", T0, T1, 9, T0),
           valu("v_add_u32", v(V2_RW), 81920, T0), valu("v_xor_b32", v(V2_RW + 1), 32, v(V2_RW))]
    vc += [valu("v_and_b32", T0, 1, W), valu("v_mul_u32_u24", T0, 5120, T0),
           valu("v_lshl_add_u32", v(V2_RO), L, 4, T0), valu("v_add_u32", v(V2_RO + 1), 40960, v(V2_RO)),
           valu("v_and_b32", T0, 1, W), valu("v_mul_u32_u24", T0, 80, T0), valu("v_and_b32", T1, 15, L),
           valu("v_add_u32", T0, T0, T1), valu("v_lshlrev_b32", T0, 12, T0), valu("v_lshrrev_b32", T1, 4, L),
           valu("v_lshl_add_u32", T0, T1, 4, T0), valu("v_lshrrev_b32", T1, 1, W),
           valu("v_lshl_add_u32", v(V2_ST), T1, 7, T0),
           valu("v_mul_u32_u24", T0, 10240, W), valu("v_lshl_add_u32", v(V2_PX), L, 4, T0)]
    return sc, vc


A2_SEL = 248


def p2_selectors():
    L, T0, T1, T2 = v(V_T), v(V_T + 2), v(V_T + 3), v(V_T + 4)
    c = [valu("v_and_b32", T0, 1, L), valu("v_lshlrev_b32", T0, 4, T0), valu("v_mov_b32", T1, "0x3f80"),
         valu("v_lshlrev_b32", T0, T0, T1),
         valu("v_bfe_u32", T1, L, 3, 1), valu("v_lshrrev_b32", T2, 4, L), valu("v_sub_u32", T1, T2, T1),
         valu("v_bfe_u32", T2, L, 1, 2), valu("v_lshl_add_u32", T1, T1, 2, T2)]
    for h in range(2):
        for d in range(4):
            c += [valu("v_cmp_eq_u32", "vcc", 8 * h + d, T1), valu("v_cndmask_b32", T2, 0, T0),
                  valu("v_accvgpr_write_b32", a(A2_SEL + 4 * h + d), T2)]
    return c


def check(name, load, test, first=()):
    again = Ins(load.text, "other", uses=load.uses)
    OUTLINE.extend([label(f"{name}_slow")] + list(first) + [salu("s_mov_b32", s(S_SPIN), 200000), label(name), again,
                   raw("s_waitcnt vmcnt(0)")] + test() +
                   [raw(f"s_cbranch_scc1 {name}_ok", "branch"), raw("s_sleep 2"),
                    salu("s_sub_u32", s(S_SPIN), s(S_SPIN), 1), raw(f"s_cbranch_scc0 {name}", "branch"),
                    raw(f"s_branch {name}_ok", "branch")])
    return test() + [raw(f"s_cbranch_scc0 {name}_slow", "xbranch", uses={"scc"}), Ins(f"{name}_ok:", "xlabel")]


def phase2():
    one, zero, lane4, pf = v(V2_T + 7), v(V2_T + 1), v(V2_T + 5), v(V2_T + 2)
    flag_load = buf_load("buffer_load_dword", pf, lane4, s(S_FLAG, 4), s(S2_FL), 0, "sc1")
    part_load = buf_load("buffer_load_dword", pf, zero, s(S_FLAG, 4), s(S_PFLAG), 0, "sc1")
    flag_test = lambda: [valu("v_cmp_lt_u32", s(52, 2), s(S2_T1), pf), salu("s_cmp_eq_u64", s(52, 2), -1)]
    part_test = lambda: [valu("v_readfirstlane_b32", s(S_POLL), pf), salu("s_or_b32", s(S_POLL), s(S_POLL), s(S2_PLD)),
                         salu("s_cmp_ge_u32", s(S_POLL), 1)]
    c = [salu("s_or_b32", s(S2_T1), s(S_XCC), "0x100"), valu("v_mov_b32", one, s(S2_T1)),
         salu("s_movk_i32", s(S2_T1), "0xff")]
    srd(c, S2_PART, s(50), s(51), 40960)
    c += [waitvm(lambda t: t == ("ost", 0)),
          buf_store("buffer_store_dword", one, v(V_ONE), s(S_FLAG, 4), s(S_MYFLAG), 0, CFG["o_st_flags"],
                    tag=("flag", 0)),
          Ins("; local end", "mark", tag="end"), label("L_published")]
    stamp(c, 7)
    if CFG["own_first"]:
        c += [barrier()]
    else:
        c += [flag_load] + check("L_flag", flag_load, flag_test)
    stamp(c, 8)
    c += [x for m in range(CFG["o_pre"]) for x in flat(p2_o(m))]
    if CFG["wo_slots"] == 5:
        c += flat(p2_wo(4))
    c += [valu("v_add_u32", v(V2_RW2 + h), 131072 - 81920, v(V2_RW + h)) for h in range(2)]

    acc = lambda T, qb: V2_ACC + (T * 5 + qb) * 4
    wf = lambda m, st, T: A2_WF + 4 * ((8 * m + 2 * T + st) % 6)
    of = lambda m, st, qb: A2_OF + 20 * (2 * (m & 1) + st) + 4 * qb
    mf = []
    for m in range(32):
        for T in range(4):
            for qq in range(5):
                qb = qq if T % 2 == 0 else 4 - qq
                d = v(acc(T, qb), 4)
                for i in range(2):
                    st = (i + qq + T) & 1
                    mf.append(mfma(d, a(wf(m, st, T), 4), a(of(m, st, qb), 4), d if (m or i) else 0))
    sel = lambda pair: [mfma(v(acc(2 * pair + h, qb), 4), a(A2_SEL + 4 * h, 4), v(V2_IN + 4 * (pair * 5 + qb), 4),
                             v(acc(2 * pair + h, qb), 4)) for qb in range(5) for h in range(2)]
    mf = mf[:-20] + sel(0) + mf[-20:] + sel(1)
    G = Gaps(mf)

    def w_reads(m, st, T):
        slot = WO_SLOT[m % CFG["wo_slots"]]
        base, off = (V2_RW2, slot - 131072) if slot >= 131072 else (V2_RW, slot - 81920)
        return [ds_read("ds_read_b64_tr_b16", a(wf(m, st, T) + 2 * kt, 2), v(base + (T & 1)),
                        off + st * 8192 + kt * 4096 + (T >> 1) * 256) for kt in range(2)]

    def o_read(m, st, qb):
        return ds_read("ds_read_b128", a(of(m, st, qb), 4), v(V2_RO + ((m % 4) >> 1)),
                       (m & 1) * 20480 + st * 10240 + qb * 1024)

    BAR = 18
    c += [waitvm(lambda t: t == ("w", 0)), barrier()]
    c += [o_read(0, 0, 0)] + w_reads(0, 0, 0) + [o_read(0, 1, 0)] + w_reads(0, 1, 0)
    c += [o_read(0, (i + qb) & 1, qb) for qb in range(1, 5) for i in range(2)][:6] + [wait(lg=6)]
    c += [o_read(0, 0, 4), o_read(0, 1, 4)] + w_reads(0, 1, 1) + w_reads(0, 0, 1)
    for m in range(32):
        for T in range(4):
            for st in range(2):
                if m or T >= 2:
                    G.put(40 * m + 10 * (T - 2) + st, *w_reads(m, st ^ (T & 1), T))
        if m:
            g = 40 * (m - 1) + BAR + 1
            for qb in range(5):
                for i in range(2):
                    g = G.place(o_read(m, (i + qb) & 1, qb), g, g + 4) + (1 if i and not CFG["dense"] else 0)
            assert g < 40 * m - 2
    for m in range(31):
        G.put(40 * m + BAR, waitlds(), waitvm(lambda t, m=m: t == ("w", m + 1)), barrier())

    last = [0]

    def spread(pairs, g0, g1):
        for i, (sc, op) in enumerate(pairs):
            last[0] = G.with_scalars(sc, op, g0 + (g1 - g0) * i // max(len(pairs) - 1, 1), last[0])
        return last[0]

    if CFG["own_first"]:
        G.put(2, flag_load)
        G.put_seq(BAR - 2, *check("L_flag", flag_load, flag_test))
    lead = CFG["lead"]
    early = [x for m in range(CFG["o_pre"], 4) for x in p2_o(m)]
    spread(early[:5], 4, BAR - 3)
    wl = CFG["wo_slots"]
    for m in range(4, 32):
        g0 = 40 * (m - lead) + BAR + 4
        wo = p2_wo(m + wl - 4) if m + wl - 4 < 32 else []
        assert spread((early[5:] if m == 4 else []) + wo + p2_o(m), g0, g0 + 33) < g0 + 40
    pg = CFG["part_at"]
    G.put(pg - 50, part_load)
    G.put_seq(pg - 5, *check("L_part", part_load, part_test))
    pl = [([salu("s_add_u32", s(S2_T1), s(S2_PLD), (t // 4) * 4096)] if t % 4 == 0 else [],
           buf_load("buffer_load_dwordx4", v(V2_IN + 4 * t, 4), v(V2_PX), s(S2_PART, 4), s(S2_T1), (t % 4) * 1024,
                    "sc1", tag=("p", 0))) for t in range(10)]
    spread(pl, pg, min(pg + 45, 40 * 31 + 20))
    for k, m in enumerate((7, 23)):
        st = []
        stamp(st, 5 + k, group="z")
        G.put(40 * m + 39, *st)
    PS = [1, 3, 7, 11, 15, 19, 23, 27]
    for k, m in enumerate(PS):
        st = []
        stamp(st, 2 + k, group="p")
        G.put(40 * m + 39, *st)
    PK = 32
    role = [salu("s_bitcmp1_b32", s(S_HP), 3)]
    G.put(40 * 30 + 1, *role, *[salu("s_cselect_b32", s(S2_OUT + i), s(S2_OUT + i), s(S2_PART + i)) for i in range(3)])
    G.put(40 * 30 + 3, *role, salu("s_cselect_b64", "vcc", -1, 0))
    G.put(40 * 30 + 4, salu("s_movk_i32", s(52), 1024), salu("s_movk_i32", s(53), 5120))
    G.put(40 * 30 + 5, *role, salu("s_cselect_b32", s(52), 65536, s(52)), salu("s_cselect_b32", s(53), 64, s(53)))
    G.place(valu("v_cndmask_b32", v(V2_ST), v(V2_PX), v(V2_ST)), 40 * 30 + 6, 40 * 30 + 12)

    assert "sc1" in CFG["out_flags"]

    def tail(pair):
        out = []
        for qb in range(5):
            k = PK + 20 * pair + 4 * qb
            ops = [valu("v_cvt_pk_bf16_f32", v(k + 2 * h + i), v(acc(2 * pair + h, qb) + 2 * i),
                        v(acc(2 * pair + h, qb) + 2 * i + 1)) for h in range(2) for i in range(2)]
            out.append(ops)
        for op in ("v_permlane32_swap_b32", "v_permlane16_swap_b32"):
            out.append([perm(op, v(PK + 20 * pair + 4 * qb + i), v(PK + 20 * pair + 4 * qb + 2 + i))
                        for qb in range(5) for i in range(2)])
        for qb in range(5):
            off = salu("s_add_u32", s(S2_T0), s(S2_T0), s(52)) if qb else \
                salu("s_mov_b32", s(S2_T0), s(53) if pair else 0)
            out.append([off, buf_store("buffer_store_dwordx4", v(PK + 20 * pair + 4 * qb, 4), v(V2_ST),
                                       s(S2_OUT, 4), s(S2_T0), 0, CFG["out_flags"])])
        return [x for o in out for x in o]

    t0 = tail(0)
    g = len(mf) - 30 + 3
    while t0 and g < len(mf):
        n = 0
        while t0 and (n < 2 or not t0[0].cost):
            n += bool(t0[0].cost)
            G.put_seq(g, t0.pop(0))
        g += 1
    stamp(c, 1, group="p")
    c += G.flatten()
    stamp(c, 9)
    stamp(c, 10, group="p")
    c += t0 + tail(1)
    c += role + [raw("s_cbranch_scc1 L_done", "branch", uses={"scc"}), raw("s_waitcnt vmcnt(0)"),
                 raw(f"buffer_store_dword {one}, {v(V_ONE)}, {s(S_FLAG, 4)}, {s(S_PFLAG)} offen sc1")]
    c += [label("L_done")]
    stamp(c, 10)
    if CFG["stamps"]:
        c += [wait(vm=0)]
    stamp(c, 11)
    stamp(c, 11, group="p")
    if CFG.get("xcc"):
        c += [raw("s_getreg_b32 s81, hwreg(HW_REG_XCC_ID)", "salu", defs={"s81"}),
              salu("s_and_b32", s(81), s(81), 15), salu("s_add_u32", s(81), s(81), s(70))]
    return c


def kernel():
    OUTLINE.clear()
    c = [label("L_code0")]
    stamp(c, 0)
    c += k1_prologue_early()
    c += k1_qproj() + k1_attention() + phase2()
    if "probe" in CFG:
        c += [salu("s_cmp_lg_u32", s(2), 1), raw("s_cbranch_scc1 L_end", "branch"),
              salu("s_sub_u32", s(56), s(82 + CFG["probe"]), s(82)), salu("s_mul_i32", s(56), s(56), 10),
              salu("s_add_u32", s(56), s(56), s(93)), label("L_probe"),
              raw("s_memrealtime s[98:99]"), raw("s_waitcnt lgkmcnt(0)"), salu("s_sub_u32", s(57), s(98), s(56)),
              salu("s_cmp_lt_i32", s(57), 0), raw("s_cbranch_scc1 L_probe", "branch")]
    elif CFG.get("dbgstamps"):
        c += [salu("s_not_b32", s(56), s(82)), valu("v_mov_b32", v(2), s(56)),
              Ins(f"buffer_atomic_umax v2, {v(V_ONE)}, {s(S_DBG, 4)}, 0 offen offset:12 sc1", "vm_st", (), {"v2"})]
        for i in range(12):
            c += [valu("v_mov_b32", v(3 + i), s(82 + i)),
                  Ins(f"buffer_atomic_umax v{3 + i}, {v(V_ONE)}, {s(S_DBG, 4)}, 0 offen offset:{16 + 4 * i} sc1",
                      "vm_st", (), {f"v{3 + i}"})]
    else:
        store_stamps(c, 12, s(S_WS), s(S_WS + 1), 0x4000000, s(S_W))
    c += [label("L_end"), raw("s_endpgm")] + OUTLINE
    return c


def audit(code):
    phase, over, cnt, worst = "q", {}, {}, {}
    i = 0
    idx = [k for k, x in enumerate(code) if x.kind == "mfma"]
    for n, (k0, k1) in enumerate(zip(idx, idx[1:])):
        gap = [x for x in code[k0 + 1:k1] if x.kind not in ("label", "xlabel", "mark")]
        phase = "q" if n < 1280 else "att" if n < 2640 else "p2" if n < 3920 else "x"
        if len(gap) > 12:
            continue
        t = 4
        for x in gap:
            if x.cost:
                t = max(t, 8) + x.cost
            else:
                t += 4 * (x.tag if x.kind == "nop" else 1)
        if t > 16:
            over[phase] = over.get(phase, 0) + t - 16
            cnt[phase] = cnt.get(phase, 0) + 1
            key = (phase, tuple(x.kind for x in gap))
            worst[key] = worst.get(key, 0) + t - 16
    print("; overflow cycles", over, "gaps", cnt, file=sys.stderr)
    for k, x in sorted(worst.items(), key=lambda y: -y[1])[:24]:
        print(";   ", x, k, file=sys.stderr)


def finish(code, name):
    abl = CFG.get("abl", "")
    if abl:
        first = next(i for i, x in enumerate(code) if x.kind == "mfma")
        kinds = {"d": ("vm_dma", "vm_ld"), "r": ("ds_r",), "b": ("barrier",), "e": ("trans",)}
        drop = sum((kinds[k] for k in abl), ())
        last = next(i for i, x in enumerate(code) if x.text == "L_end:")
        keep = lambda x: x.tag in (("clr", 0), ("cnt", 0)) or "dword " in x.text
        code = [x for i, x in enumerate(code) if not (first < i < last and x.kind in drop and not keep(x))]
    import asmir
    asmir.AGE = CFG["age"]
    code = insert_waits(code)
    code, pad = fix_hazards(code)
    i0 = next(i for i, x in enumerate(code) if x.kind == "mark" and x.tag == "begin")
    i1 = next(i for i, x in enumerate(code) if x.kind == "mark" and x.tag == "end")
    remote = [Ins(x.text + (" sc1" if x.kind == "vm_st" else ""), x.kind) for x in code[i0 + 1:i1]]
    if CFG.get("force_remote"):
        code[i0] = raw("s_branch L_remote")
    code = [x for x in code if x.kind != "mark"] + [label("L_remote")] + remote + [raw("s_branch L_published")]
    masked = False
    for x in code:
        if x.text.startswith("s_mov_b64 exec"):
            masked = not x.text.endswith("-1")
        else:
            assert not masked or x.kind in ("ds_w", "wait", "nop"), x.text
    if CFG.get("audit"):
        audit(code)
    n = {k: sum(1 for i in code if i.kind == k) for k in ("mfma", "wait", "nop", "barrier")}
    print(f"; {name}: {len(code)} instrs, {n}, padded {pad} states", file=sys.stderr)
    return text(code)


DOC = """;
; Workgroup (branch, batch, head pair); wave (head, 80 query rows); v_mfma_f32_16x16x32_bf16 throughout.
;  4. Each workgroup accumulates a 160 x 128 output tile over its head group (half of K); head group 0 hands its
;
"""

KD = """.amdhsa_kernel {k}
  .amdhsa_next_free_vgpr 512
  .amdhsa_next_free_sgpr 102
  .amdhsa_accum_offset 256
  .amdhsa_group_segment_fixed_size 0
  .amdhsa_kernarg_size 104
  .amdhsa_user_sgpr_count 2
  .amdhsa_user_sgpr_kernarg_segment_ptr 1
  .amdhsa_system_sgpr_workgroup_id_x 1
.end_amdhsa_kernel
"""


def build(**cfg):
    CFG.update(cfg)
    ref = open(f"cdna_kernels/{NAME}.s.ref").read().splitlines()
    head = [l for l in ref if l.startswith(";") and "@launch" not in l and not l.startswith("; Override")
            and not l.startswith("; grid=ceil")]
    kernels = [(f"{NAME}_kernel", kernel())]
    out = "\n".join(head) + "\n; @launch grid=(256,1,1) block=(256,1,1) lds=163840\n"
    out += DOC + '.amdgcn_target "amdgcn-amd-amdhsa--gfx950"\n.text\n'
    for k, code in kernels:
        out += f".globl {k}\n.p2align 8\n.type {k},@function\n{k}:\n" + finish(code, k)
    out += '.section .rodata,"a"\n'
    for k, _ in kernels:
        out += ".p2align 6\n" + KD.format(k=k)
    return out


if __name__ == "__main__":
    cfg = {}
    path = f"cdna_kernels/{NAME}.s"
    for arg in sys.argv[1:]:
        if "=" in arg:
            k, val = arg.split("=", 1)
            cfg[k] = {"True": True, "False": False}.get(val, int(val) if val.isdigit() else val)
        else:
            path = arg
    open(path, "w").write(build(**cfg))
```
